```python
import torch

def _softmax(x, axis=-1):
    return torch.softmax(x, dim=axis)
def _gelu(x):
    return torch.nn.functional.gelu(x, approximate="tanh")
def _silu(x):
    return torch.nn.functional.silu(x)
def _sigmoid(x):
    return torch.sigmoid(x)
def _layernorm(x, axis=-1, eps=1e-5):
    m = x.mean(dim=axis, keepdim=True)
    v = x.var(dim=axis, keepdim=True, unbiased=False)
    return (x - m) / torch.sqrt(v + eps)
def _scatter_add(tgt, idx, src, axis=0):
    return tgt.clone().index_add_(axis, idx, src)
def _segment_sum(src, seg, n):
    out = torch.zeros((n,) + src.shape[1:], dtype=src.dtype)
    return out.index_add_(0, seg, src)
def _pad(x, pw):
    flat = tuple(v for pair in reversed(pw) for v in pair)
    return torch.nn.functional.pad(x, flat)

kernel_name = 'recurrent_scan__gqa_block_cached__dense_activation_gelu__decode'

def setup_inputs():

    _w = (lambda a: (lambda t: t.to(torch.bfloat16) if t.is_floating_point() else t)(torch.as_tensor(a)))
    def _A_setup():
        B, Sq, D = 8, 1, 448
        Hq, Hkv, Sk, Dh = 16, 8, 8192, 256
        assert Hq % Hkv == 0, (Hq, Hkv)
        return {
            "x": _w((lambda *s: torch.randn(*s, dtype=torch.bfloat16) * 0.05)(B, Sq, D)),
            "k_cache": _w((lambda *s: torch.randn(*s, dtype=torch.bfloat16) * 3.2)(B, Hkv, Sk, Dh)),
            "v_cache": _w((lambda *s: torch.randn(*s, dtype=torch.bfloat16) * 3.2)(B, Hkv, Sk, Dh)),
            "wq": _w((lambda *s: torch.randn(*s, dtype=torch.bfloat16) * 3.2)(D, Hq * Dh) * (D ** -0.5)),
            "wo": _w((lambda *s: torch.randn(*s, dtype=torch.bfloat16) * 3.2)(Hq * Dh, D) * ((Hq * Dh) ** -0.5)),
        }
    _A_in = _A_setup()

    def _B_setup():
        B, S, D, F = 8, 1, 448, 1792
        return {
            "x": _w((lambda *s: torch.randn(*s, dtype=torch.bfloat16) * 0.05)(B, S, D)),
            "w1": _w((lambda *s: torch.randn(*s, dtype=torch.bfloat16) * 3.2)(D, F) * (D ** -0.5)),
            "b1": _w((lambda *s: torch.randn(*s, dtype=torch.bfloat16) * 3.2)(F) * 0.01),
            "w2": _w((lambda *s: torch.randn(*s, dtype=torch.bfloat16) * 0.8)(F, D) * (F ** -0.5)),
            "b2": _w((lambda *s: torch.randn(*s, dtype=torch.bfloat16) * 0.8)(D) * 0.01),
        }
    _B_in = _B_setup()

    return {
        "A_x": _A_in["x"],
        "A_k_cache": _A_in["k_cache"],
        "A_v_cache": _A_in["v_cache"],
        "A_wq": _A_in["wq"],
        "A_wo": _A_in["wo"],
        "B_x": _B_in["x"],
        "B_w1": _B_in["w1"],
        "B_b1": _B_in["b1"],
        "B_w2": _B_in["w2"],
        "B_b2": _B_in["b2"],
    }

def reference(A_x, A_k_cache, A_v_cache, A_wq, A_wo, B_x, B_w1, B_b1, B_w2, B_b2):
    def _A_ref(x, k_cache, v_cache, wq, wo):
        B, Sq, D = x.shape
        Hq, Dh = 16, 256
        Hkv = k_cache.shape[1]
        rep = Hq // Hkv
        q = (lambda x, *d: x.permute(*d))((x @ wq).reshape(B, Sq, Hq, Dh), 0, 2, 1, 3)
        k = (lambda x, n, axis: torch.repeat_interleave(x, n, dim=axis))(k_cache, rep, axis=1)
        v = (lambda x, n, axis: torch.repeat_interleave(x, n, dim=axis))(v_cache, rep, axis=1)
        scores = torch.einsum("bhqd,bhkd->bhqk", q, k) * (Dh ** -0.5)
        p = _softmax(scores, axis=-1)
        o = torch.einsum("bhqk,bhkd->bhqd", p, v)
        return (lambda x, *d: x.permute(*d))(o, 0, 2, 1, 3).reshape(B, Sq, Hq * Dh) @ wo

    def _B_ref(x, w1, b1, w2, b2):
        h = torch.einsum("bsd,df->bsf", x, w1) + b1
        h = _gelu(h)
        return torch.einsum("bsf,fd->bsd", h, w2) + b2

    x = A_x
    xn = _layernorm(x, axis=-1)
    s = _A_ref(xn, A_k_cache, A_v_cache, A_wq, A_wo)
    g = _silu(_B_ref(xn, B_w1, B_b1, B_w2, B_b2))
    return x + s * g
```

```python
import struct, sys, argparse

def f32bits(x):
    return struct.unpack("<I", struct.pack("<f", x))[0]

LOG2E = 1.4426950408889634
HEADER = open("recurrent_scan__gqa_block_cached__dense_activation_gelu__decode.s.ref").read().split("; Override launch")[0]

WS_Q = 0x0
WS_H = 0x10000
WS_PO = 0x20000
WS_ML = 0xA0000
WS_P3 = 0xB0000
WS_SIZE = 0x40000000

class A:
    def __init__(self):
        self.l = []
    def __call__(self, s):
        self.l.append("    " + s)
    def label(self, s):
        self.l.append(s + ":")
    def raw(self, s):
        self.l.append(s)
    def text(self):
        return "\n".join(self.l) + "\n"

def srd(a, d, p, size):
    a(f"s_mov_b32 s{d}, s{p}")
    a(f"s_and_b32 s{d+1}, s{p+1}, 0xffff")
    a(f"s_mov_b32 s{d+2}, {size:#x}")
    a(f"s_mov_b32 s{d+3}, 0x00020000")

def kernel_head(a, name):
    a.raw(".text")
    a.raw(f".globl {name}")
    a.raw(".p2align 8")
    a.raw(f".type {name},@function")
    a.label(name)

def kernel_desc(a, name, vgpr, sgpr):
    a.raw('.section .rodata,"a"')
    a.raw(".p2align 6")
    a.raw(f".amdhsa_kernel {name}")
    a.raw(f"  .amdhsa_next_free_vgpr {vgpr}")
    a.raw(f"  .amdhsa_next_free_sgpr {sgpr}")
    a.raw(f"  .amdhsa_accum_offset {(vgpr+3)//4*4}")
    a.raw("  .amdhsa_group_segment_fixed_size 0")
    a.raw("  .amdhsa_kernarg_size 104")
    a.raw("  .amdhsa_user_sgpr_count 2")
    a.raw("  .amdhsa_user_sgpr_kernarg_segment_ptr 1")
    a.raw("  .amdhsa_system_sgpr_workgroup_id_x 1")
    a.raw(".end_amdhsa_kernel")

def xlane_reduce_g(a, op, v, t):
    a(f"v_mov_b32 v{t}, v{v}")
    a("s_nop 1")
    a(f"v_permlane16_swap_b32 v{v}, v{t}")
    a("s_nop 1")
    a(f"{op} v{v}, v{v}, v{t}")
    a(f"v_mov_b32 v{t}, v{v}")
    a("s_nop 1")
    a(f"v_permlane32_swap_b32 v{v}, v{t}")
    a("s_nop 1")
    a(f"{op} v{v}, v{v}, v{t}")

def round_bf16_pair(a, v0, v1, t):
    a(f"v_cvt_pk_bf16_f32 v{t}, v{v0}, v{v1}")
    a(f"v_lshlrev_b32 v{v0}, 16, v{t}")
    a(f"v_and_b32 v{v1}, 0xffff0000, v{t}")

def proj_body(a, is_h, tag):
    stride = 3584 if is_h else 8192
    wsize = 448 * stride
    ldsbase = 14336 if is_h else 0
    srd(a, 4, 20 if is_h else 18, wsize)
    srd(a, 8, 16, 7168)
    srd(a, 12, 24, WS_SIZE)
    if is_h:
        srd(a, 28, 22, 3584)
        a("s_mul_i32 s32, s26, 14")
    else:
        a("s_lshl_b32 s32, s26, 5")
    a("s_add_u32 s32, s32, s27")
    a("s_lshl_b32 s33, s32, 5")
    a("v_and_b32 v1, 63, v0")
    a("v_and_b32 v2, 15, v1")
    a("v_lshrrev_b32 v3, 4, v1")
    a("v_and_b32 v4, 7, v2")
    a("v_mul_u32_u24 v4, 896, v4")
    a("v_lshl_add_u32 v4, v3, 4, v4")
    X = 16
    for s in range(14):
        a(f"buffer_load_dwordx4 v[{X+4*s}:{X+4*s+3}], v4, s[8:11], 0 offen offset:{64*s}")
    a("v_lshrrev_b32 v5, 1, v1")
    a(f"v_mul_u32_u24 v5, {stride}, v5")
    a("v_and_b32 v6, 1, v1")
    a("v_lshl_add_u32 v5, v6, 4, v5")
    a("s_mov_b32 s34, s33")
    for n in range(14):
        a(f"s_mov_b32 m0, {ldsbase + n*1024}")
        a("s_nop 0")
        a("buffer_load_dwordx4 v5, s[4:7], s34 offen lds")
        if n < 13:
            a(f"s_add_u32 s34, s34, {32*stride}")
    if is_h:
        a("v_lshlrev_b32 v7, 1, v2")
        a("buffer_load_ushort v8, v7, s[28:31], s33 offen")
    nb = 1 if is_h else 0
    a(f"s_waitcnt vmcnt({14+nb})")
    F = 72
    for k in range(56):
        a(f"v_lshlrev_b32 v{F+2*k}, 16, v{X+k}")
        a(f"v_and_b32 v{F+2*k+1}, 0xffff0000, v{X+k}")
    for c in range(4):
        a(f"v_add_f32 v{10+c}, v{F+c}, v{F+4+c}")
    for k in range(8, 112, 4):
        for c in range(4):
            a(f"v_add_f32 v{10+c}, v{10+c}, v{F+k+c}")
    a("v_add_f32 v10, v10, v11")
    a("v_add_f32 v12, v12, v13")
    a("v_add_f32 v10, v10, v12")
    xlane_reduce_g(a, "v_add_f32", 10, 11)
    a(f"v_mul_f32 v10, {f32bits(1.0/448):#x}, v10")
    a(f"v_sub_f32 v12, v{F}, v10")
    a("v_mul_f32 v13, v12, v12")
    a(f"v_sub_f32 v12, v{F+1}, v10")
    a("v_mul_f32 v14, v12, v12")
    for k in range(2, 112):
        a(f"v_sub_f32 v12, v{F+k}, v10")
        a(f"v_fmac_f32 v{13+(k&1)}, v12, v12")
    a("v_add_f32 v13, v13, v14")
    xlane_reduce_g(a, "v_add_f32", 13, 11)
    a(f"v_mul_f32 v13, {f32bits(1.0/448):#x}, v13")
    round_bf16_pair(a, 10, 13, 11)
    a(f"v_add_f32 v13, {f32bits(1e-5):#x}, v13")
    round_bf16_pair(a, 13, 12, 11)
    a("v_sqrt_f32 v13, v13")
    a("s_nop 0")
    round_bf16_pair(a, 13, 12, 11)
    a("v_rcp_f32 v14, v13")
    a("s_nop 0")
    for k in range(56):
        f0, f1 = F+2*k, F+2*k+1
        a(f"v_sub_f32 v{f0}, v{f0}, v10")
        a(f"v_sub_f32 v{f1}, v{f1}, v10")
        round_bf16_pair(a, f0, f1, 11)
        a(f"v_mul_f32 v12, v{f0}, v14")
        a(f"v_mul_f32 v15, v{f1}, v14")
        a(f"v_fma_f32 v{f0}, -v12, v13, v{f0}")
        a(f"v_fma_f32 v{f1}, -v15, v13, v{f1}")
        a(f"v_fmac_f32 v12, v{f0}, v14")
        a(f"v_fmac_f32 v15, v{f1}, v14")
        a(f"v_cvt_pk_bf16_f32 v{X+k}, v12, v15")
    a("v_lshrrev_b32 v4, 2, v2")
    a("v_lshl_add_u32 v4, v3, 3, v4")
    a("v_lshlrev_b32 v4, 5, v4")
    a("v_and_b32 v5, 3, v2")
    a("v_lshl_add_u32 v4, v5, 3, v4")
    a("s_waitcnt vmcnt(0)")
    B = 184
    for s in range(14):
        a(f"ds_read_b64_tr_b16 v[{B+4*s}:{B+4*s+1}], v4 offset:{ldsbase+1024*s}")
        a(f"ds_read_b64_tr_b16 v[{B+4*s+2}:{B+4*s+3}], v4 offset:{ldsbase+1024*s+128}")
    a("s_waitcnt lgkmcnt(0)")
    D = 240
    for s in range(14):
        c = "0" if s == 0 else f"v[{D}:{D+3}]"
        a(f"v_mfma_f32_16x16x32_bf16 v[{D}:{D+3}], v[{X+4*s}:{X+4*s+3}], v[{B+4*s}:{B+4*s+3}], {c}")
    a("s_nop 7")
    a("s_nop 3")
    rowb = 3584 if is_h else 8192
    if is_h:
        a("v_lshlrev_b32 v8, 16, v8")
        for p in range(2):
            round_bf16_pair(a, D+2*p, D+2*p+1, 11)
        for r in range(4):
            a(f"v_add_f32 v{D+r}, v{D+r}, v8")
        for p in range(2):
            round_bf16_pair(a, D+2*p, D+2*p+1, 11)
        kk = -2.0 * LOG2E * 0.7978845608028654
        for r in range(4):
            x = D + r
            a(f"v_mul_f32 v12, v{x}, v{x}")
            a(f"v_mul_f32 v12, {f32bits(0.044715):#x}, v12")
            a(f"v_fma_f32 v12, v12, v{x}, v{x}")
            a(f"v_mul_f32 v12, {f32bits(kk):#x}, v12")
            a("v_exp_f32 v12, v12")
            a("s_nop 0")
            a("v_add_f32 v12, 1.0, v12")
            a("v_rcp_f32 v12, v12")
            a("s_nop 0")
            a(f"v_mul_f32 v{x}, v{x}, v12")
    a(f"v_cvt_pk_bf16_f32 v12, v{D}, v{D+1}")
    a(f"v_cvt_pk_bf16_f32 v13, v{D+2}, v{D+3}")
    a(f"v_mul_u32_u24 v4, {4*rowb}, v3")
    a("v_lshl_add_u32 v4, v2, 1, v4")
    base = WS_H if is_h else WS_Q
    a(f"s_add_u32 s34, s33, {base}")
    a(f"s_add_u32 s35, s34, {rowb}")
    a(f"s_add_u32 s36, s34, {2*rowb}")
    a(f"s_add_u32 s37, s34, {3*rowb}")
    a("v_cmp_gt_u32 vcc, 32, v1")
    a("s_and_saveexec_b64 s[38:39], vcc")
    a("buffer_store_short v12, v4, s[12:15], s34 offen")
    a("buffer_store_short_d16_hi v12, v4, s[12:15], s35 offen")
    a("buffer_store_short v13, v4, s[12:15], s36 offen")
    a("buffer_store_short_d16_hi v13, v4, s[12:15], s37 offen")
    a("s_endpgm")

def k1(a):
    name = "proj_kernel"
    kernel_head(a, name)
    a("s_cmp_ge_u32 s2, 256")
    a("s_cbranch_scc1 L1_end")
    a("s_load_dwordx2 s[16:17], s[0:1], 0")
    a("s_load_dwordx2 s[18:19], s[0:1], 24")
    a("s_load_dwordx4 s[20:23], s[0:1], 48")
    a("s_load_dwordx2 s[24:25], s[0:1], 96")
    a("v_lshrrev_b32 v1, 6, v0")
    a("s_and_b32 s26, s2, 7")
    a("v_readfirstlane_b32 s3, v1")
    a("s_lshr_b32 s27, s2, 3")
    a("s_waitcnt lgkmcnt(0)")
    a("s_cmp_eq_u32 s3, 0")
    a("s_cbranch_scc0 L1_h")
    proj_body(a, False, "q")
    a.label("L1_h")
    a("s_cmp_ge_u32 s27, 14")
    a("s_cbranch_scc1 L1_end")
    proj_body(a, True, "h")
    a.label("L1_end")
    a("s_endpgm")
    kernel_desc(a, name, 244, 48)

def k2(a, nt=False):
    name = "attn_kernel"
    pol = " nt" if nt else ""
    QF, ACC, KO, VO, KR, VR, KF, VF, S = 16, 48, 112, 120, 128, 132, 140, 172, 204
    M, L, PB = 208, 209, 220
    kernel_head(a, name)
    a("s_cmp_ge_u32 s2, 256")
    a("s_cbranch_scc1 L2_end")
    a("s_load_dwordx4 s[16:19], s[0:1], 8")
    a("s_load_dwordx2 s[20:21], s[0:1], 96")
    a("v_lshrrev_b32 v1, 6, v0")
    a("v_and_b32 v2, 63, v0")
    a("v_readfirstlane_b32 s3, v1")
    a("v_and_b32 v3, 15, v2")
    a("v_lshrrev_b32 v4, 4, v2")
    a("v_lshrrev_b32 v5, 5, v2")
    a("v_and_b32 v6, 31, v2")
    a("s_lshl_b32 s22, s2, 20")
    a("s_lshl_b32 s23, s3, 18")
    a("s_add_u32 s22, s22, s23")
    a("s_add_u32 s26, s22, 0x40000")
    a("s_mov_b32 s27, 0x80000000")
    a("s_lshl_b32 s25, s3, 15")
    for k in range(8):
        a(f"s_add_u32 s{32+k}, s25, {k*4096}")
    a("s_lshr_b32 s24, s2, 2")
    a("s_lshl_b32 s24, s24, 10")
    a("s_waitcnt lgkmcnt(0)")
    srd(a, 4, 16, 0x10000000)
    srd(a, 8, 18, 0x10000000)
    srd(a, 12, 20, WS_SIZE)
    a("v_and_b32 v7, 1, v3")
    a("v_lshlrev_b32 v7, 9, v7")
    a("v_lshl_add_u32 v7, v4, 4, v7")
    for s in range(8):
        a(f"buffer_load_dwordx4 v[{QF+4*s}:{QF+4*s+3}], v7, s[12:15], s24 offen offset:{64*s}")
    a("v_lshlrev_b32 v8, 9, v5")
    for n in range(8):
        add = 4096 if n >= 4 else 0
        a(f"v_or_b32 v9, {2*n}, v5")
        a("v_xor_b32 v9, v9, v6")
        a(f"v_lshl_add_u32 v{KO+n}, v9, 4, v8")
        if add:
            a(f"v_add_u32 v{KO+n}, {add}, v{KO+n}")
        a(f"v_or_b32 v9, {(2*n)&7}, v5")
        a("v_lshlrev_b32 v9, 1, v9")
        a("v_xor_b32 v9, v9, v6")
        a(f"v_lshl_add_u32 v{VO+n}, v9, 4, v8")
        if add:
            a(f"v_add_u32 v{VO+n}, {add}, v{VO+n}")

    def issue(kind, slot, soff):
        srdr = "s[4:7]" if kind == "K" else "s[8:11]"
        vo = KO if kind == "K" else VO
        sl = slot + (0 if kind == "K" else 2)
        for half in range(2):
            a(f"s_mov_b32 m0, s{32 + 2*sl + half}")
            a("s_nop 0")
            for q in range(4):
                n = 4*half + q
                off = f" offset:{1024*q}" if q else ""
                a(f"buffer_load_dwordx4 v{vo+n}, {srdr}, {soff} offen{off}{pol} lds")
    a("s_add_u32 s28, s22, 8192")
    issue("K", 0, "s22")
    issue("V", 0, "s22")
    issue("K", 1, "s28")
    issue("V", 1, "s28")
    a("s_add_u32 s22, s22, 16384")
    a("v_xor_b32 v9, v4, v3")
    a("v_and_b32 v9, 3, v9")
    a("v_and_b32 v10, 12, v3")
    a("v_lshlrev_b32 v11, 9, v3")
    a("v_add_u32 v11, s25, v11")
    for q in range(4):
        a(f"v_xor_b32 v12, {4*q}, v10")
        a("v_add_u32 v12, v12, v9")
        a(f"v_lshl_add_u32 v{KR+q}, v12, 4, v11")
    a("v_lshrrev_b32 v9, 2, v3")
    a("v_lshl_add_u32 v9, v4, 2, v9")
    a("v_lshlrev_b32 v11, 9, v9")
    a("v_add_u32 v11, s25, v11")
    a("v_add_u32 v11, 16384, v11")
    a("v_and_b32 v10, 1, v3")
    a("v_lshl_add_u32 v11, v10, 3, v11")
    a("v_bfe_u32 v10, v3, 1, 1")
    a("v_lshl_add_u32 v11, v10, 4, v11")
    a("v_and_b32 v9, 7, v9")
    for nn in range(8):
        a(f"v_xor_b32 v12, {nn}, v9")
        a(f"v_lshl_add_u32 v{VR+nn}, v12, 5, v11")
    for k in range(64):
        a(f"v_mov_b32 v{ACC+k}, 0")
    a(f"v_mov_b32 v{M}, 0xf149f2ca")
    a(f"v_mov_b32 v{L}, 0")
    a(f"s_mov_b32 s30, {f32bits(LOG2E/16):#x}")
    a("s_mov_b32 s24, 0")
    a.label("L2_loop")
    for slot in range(2):
        so = slot * 8192
        a("s_cmp_lt_u32 s22, s26")
        a("s_cselect_b32 s29, s22, s27")
        a("s_add_u32 s22, s22, 8192")
        a("s_waitcnt vmcnt(24)")
        for s in range(8):
            a(f"ds_read_b128 v[{KF+4*s}:{KF+4*s+3}], v{KR+(s&3)} offset:{so + (s>>2)*256}")
        for s in range(8):
            a(f"s_waitcnt lgkmcnt({7-s})")
            c = "0" if s == 0 else f"v[{S}:{S+3}]"
            a(f"v_mfma_f32_16x16x32_bf16 v[{S}:{S+3}], v[{KF+4*s}:{KF+4*s+3}], v[{QF+4*s}:{QF+4*s+3}], {c}")
        issue("K", slot, "s29")
        round_bf16_pair(a, S, S+1, 210)
        round_bf16_pair(a, S+2, S+3, 211)
        a(f"v_max3_f32 v212, v{S}, v{S+1}, v{S+2}")
        a(f"v_max_f32 v212, v212, v{S+3}")
        xlane_reduce_g(a, "v_max_f32", 212, 213)
        a(f"v_max_f32 v212, v212, v{M}")
        a(f"v_sub_f32 v213, v{M}, v212")
        a(f"v_mov_b32 v{M}, v212")
        a("v_mul_f32 v213, s30, v213")
        for r in range(4):
            a(f"v_sub_f32 v{S+r}, v{S+r}, v212")
        a("v_exp_f32 v213, v213")
        for r in range(4):
            a(f"v_mul_f32 v{S+r}, s30, v{S+r}")
        for r in range(4):
            a(f"v_exp_f32 v{S+r}, v{S+r}")
        a("s_nop 0")
        a(f"v_add_f32 v214, v{S}, v{S+1}")
        a(f"v_add_f32 v215, v{S+2}, v{S+3}")
        a(f"v_cvt_pk_bf16_f32 v{PB}, v{S}, v{S+1}")
        a(f"v_cvt_pk_bf16_f32 v{PB+1}, v{S+2}, v{S+3}")
        a("v_add_f32 v214, v214, v215")
        a(f"v_fma_f32 v{L}, v{L}, v213, v214")
        for k in range(64):
            a(f"v_mul_f32 v{ACC+k}, v213, v{ACC+k}")
        a("s_waitcnt vmcnt(24)")
        for n in range(16):
            a(f"ds_read_b64_tr_b16 v[{VF+2*n}:{VF+2*n+1}], v{VR+(n&7)} offset:{so + (n>>3)*256}")
        for n in range(16):
            a(f"s_waitcnt lgkmcnt({15-n})")
            a(f"v_mfma_f32_16x16x16_bf16 v[{ACC+4*n}:{ACC+4*n+3}], v[{VF+2*n}:{VF+2*n+1}], v[{PB}:{PB+1}], v[{ACC+4*n}:{ACC+4*n+3}]")
        issue("V", slot, "s29")
    a("s_add_u32 s24, s24, 1")
    a("s_cmp_lt_u32 s24, 16")
    a("s_cbranch_scc1 L2_loop")
    xlane_reduce_g(a, "v_add_f32", L, 213)
    a("s_waitcnt vmcnt(0)")
    a("v_lshlrev_b32 v9, 10, v3")
    a("v_lshl_add_u32 v9, v4, 4, v9")
    a("v_add_u32 v9, s25, v9")
    a("v_lshlrev_b32 v10, 3, v3")
    a("v_add_u32 v10, s25, v10")
    a("v_cmp_gt_u32 vcc, 2, v3")
    a("s_and_saveexec_b64 s[40:41], vcc")
    for n in range(16):
        a(f"ds_write_b128 v9, v[{ACC+4*n}:{ACC+4*n+3}] offset:{64*n}")
    a(f"ds_write_b64 v10, v[{M}:{L}] offset:2048")
    a("s_mov_b64 exec, s[40:41]")
    a("s_waitcnt lgkmcnt(0)")
    a("s_barrier")
    a("v_lshrrev_b32 v9, 7, v0")
    a("v_and_b32 v10, 127, v0")
    a("v_lshlrev_b32 v11, 3, v9")
    a("v_lshlrev_b32 v12, 10, v9")
    a("v_lshl_add_u32 v12, v10, 3, v12")
    a("v_add_u32 v13, 0x10000, v11")
    a("v_add_u32 v14, 0x10000, v12")
    for w in range(4):
        a(f"ds_read_b64 v[{20+2*w}:{21+2*w}], v{11 if w < 2 else 13} offset:{(w&1)*32768+2048}")
    for w in range(4):
        a(f"ds_read_b64 v[{30+2*w}:{31+2*w}], v{12 if w < 2 else 14} offset:{(w&1)*32768}")
    a("s_waitcnt lgkmcnt(0)")
    a("v_max3_f32 v40, v20, v22, v24")
    a("v_max_f32 v40, v40, v26")
    for w in range(4):
        a(f"v_sub_f32 v{20+2*w}, v{20+2*w}, v40")
        a(f"v_mul_f32 v{20+2*w}, s30, v{20+2*w}")
        a(f"v_exp_f32 v{20+2*w}, v{20+2*w}")
    a("s_nop 0")
    a("v_mul_f32 v41, v20, v21")
    a("v_mul_f32 v42, v20, v30")
    a("v_mul_f32 v43, v20, v31")
    for w in range(1, 4):
        a(f"v_fmac_f32 v41, v{20+2*w}, v{21+2*w}")
        a(f"v_fmac_f32 v42, v{20+2*w}, v{30+2*w}")
        a(f"v_fmac_f32 v43, v{20+2*w}, v{31+2*w}")
    a("s_lshl_b32 s24, s2, 11")
    a(f"s_add_u32 s24, s24, {WS_PO}")
    a("buffer_store_dwordx2 v[42:43], v12, s[12:15], s24 offen")
    a("s_lshl_b32 s24, s2, 4")
    a(f"s_add_u32 s24, s24, {WS_ML}")
    a("v_cmp_eq_u32 vcc, 0, v10")
    a("s_and_saveexec_b64 s[40:41], vcc")
    a("buffer_store_dwordx2 v[40:41], v11, s[12:15], s24 offen")
    a.label("L2_end")
    a("s_endpgm")
    kernel_desc(a, name, 224, 48)

def k3(a):
    name = "out_kernel"
    kernel_head(a, name)
    a("s_cmp_ge_u32 s2, 161")
    a("s_cbranch_scc1 L3_end")
    a("s_load_dwordx2 s[16:17], s[0:1], 0")
    a("s_load_dwordx2 s[18:19], s[0:1], 32")
    a("s_load_dwordx4 s[20:23], s[0:1], 64")
    a("s_load_dwordx4 s[24:27], s[0:1], 80")
    a("s_load_dwordx2 s[28:29], s[0:1], 96")
    a(f"s_mul_i32 s30, s2, {(1<<16)//7+1}")
    a("s_lshr_b32 s30, s30, 16")
    a("s_mul_i32 s31, s30, 7")
    a("s_sub_u32 s31, s2, s31")
    a("v_lshrrev_b32 v1, 6, v0")
    a("v_and_b32 v2, 63, v0")
    a("v_readfirstlane_b32 s3, v1")
    a("v_and_b32 v3, 15, v2")
    a("v_lshrrev_b32 v4, 4, v2")
    a("s_waitcnt lgkmcnt(0)")
    srd(a, 12, 28, WS_SIZE)
    a("v_lshrrev_b32 v5, 3, v2")
    a("v_mul_u32_u24 v5, 896, v5")
    a("v_and_b32 v6, 7, v2")
    a("v_lshl_add_u32 v5, v6, 4, v5")
    a("s_lshl_b32 s33, s31, 7")
    a(f"s_mul_i32 s34, s3, {64*896}")
    a("s_add_u32 s33, s33, s34")
    a("s_lshl_b32 s35, s3, 13")
    a("v_lshrrev_b32 v7, 5, v0")
    a("v_and_b32 v8, 31, v0")
    a("s_cmp_ge_u32 s30, 16")
    a("s_cbranch_scc1 L3_ffn")
    srd(a, 4, 18, 4096*896)
    a(f"s_mul_i32 s34, s30, {256*896}")
    a("s_add_u32 s33, s33, s34")
    for n in range(8):
        a(f"s_add_u32 m0, s35, {n*1024}")
        a("s_nop 0")
        a("buffer_load_dwordx4 v5, s[4:7], s33 offen lds")
        if n < 7:
            a(f"s_add_u32 s33, s33, {8*896}")
    a("v_lshlrev_b32 v9, 16, v7")
    a("v_lshl_add_u32 v9, v8, 5, v9")
    a("s_lshr_b32 s36, s30, 1")
    a("s_lshl_b32 s36, s36, 13")
    a("s_and_b32 s37, s30, 1")
    a("s_lshl_b32 s38, s37, 10")
    a("s_add_u32 s36, s36, s38")
    a(f"s_add_u32 s36, s36, {WS_PO}")
    for sp in range(4):
        a(f"buffer_load_dwordx4 v[{16+8*sp}:{19+8*sp}], v9, s[12:15], s36 offen offset:{sp*2048}" if sp < 2 else
          f"buffer_load_dwordx4 v[{16+8*sp}:{19+8*sp}], v9, s[12:15], s39 offen offset:{(sp-2)*2048}")
        a(f"buffer_load_dwordx4 v[{20+8*sp}:{23+8*sp}], v9, s[12:15], s36 offen offset:{sp*2048+16}" if sp < 2 else
          f"buffer_load_dwordx4 v[{20+8*sp}:{23+8*sp}], v9, s[12:15], s39 offen offset:{(sp-2)*2048+16}")
        if sp == 0:
            a("s_add_u32 s39, s36, 4096")
    a("v_lshlrev_b32 v10, 9, v7")
    a("s_lshr_b32 s36, s30, 1")
    a("s_lshl_b32 s36, s36, 6")
    a("s_lshl_b32 s38, s37, 3")
    a("s_add_u32 s36, s36, s38")
    a(f"s_add_u32 s36, s36, {WS_ML}")
    for sp in range(4):
        a(f"buffer_load_dwordx2 v[{48+2*sp}:{49+2*sp}], v10, s[12:15], s36 offen offset:{sp*16}")
    a(f"s_mov_b32 s40, {f32bits(LOG2E/16):#x}")
    a("s_waitcnt vmcnt(0)")
    a("v_max3_f32 v56, v48, v50, v52")
    a("v_max_f32 v56, v56, v54")
    for sp in range(4):
        a(f"v_sub_f32 v{48+2*sp}, v{48+2*sp}, v56")
        a(f"v_mul_f32 v{48+2*sp}, s40, v{48+2*sp}")
        a(f"v_exp_f32 v{48+2*sp}, v{48+2*sp}")
    a("s_nop 0")
    a("v_mul_f32 v57, v48, v49")
    for sp in range(1, 4):
        a(f"v_fmac_f32 v57, v{48+2*sp}, v{49+2*sp}")
    a("v_rcp_f32 v57, v57")
    a("s_nop 0")
    for sp in range(4):
        a(f"v_mul_f32 v{48+2*sp}, v{48+2*sp}, v57")
    for e in range(8):
        a(f"v_mul_f32 v{16+e}, v48, v{16+e}")
        for sp in range(1, 4):
            a(f"v_fmac_f32 v{16+e}, v{48+2*sp}, v{16+8*sp+e}")
    for p in range(4):
        a(f"v_cvt_pk_bf16_f32 v{60+p}, v{16+2*p}, v{17+2*p}")
    a("s_branch L3_act")
    a.label("L3_ffn")
    srd(a, 4, 20, 1792*896)
    a("s_sub_u32 s36, s30, 16")
    a(f"s_mul_i32 s34, s36, {256*896}")
    a("s_add_u32 s33, s33, s34")
    for n in range(8):
        a(f"s_add_u32 m0, s35, {n*1024}")
        a("s_nop 0")
        a("buffer_load_dwordx4 v5, s[4:7], s33 offen lds")
        if n < 7:
            a(f"s_add_u32 s33, s33, {8*896}")
    a("v_mul_u32_u24 v9, 3584, v7")
    a("v_lshl_add_u32 v9, v8, 4, v9")
    a("s_lshl_b32 s36, s36, 9")
    a(f"s_add_u32 s36, s36, {WS_H}")
    a("buffer_load_dwordx4 v[60:63], v9, s[12:15], s36 offen")
    a("s_waitcnt vmcnt(0)")
    a.label("L3_act")
    a("v_lshlrev_b32 v9, 9, v7")
    a("v_lshl_add_u32 v9, v8, 4, v9")
    a("ds_write_b128 v9, v[60:63] offset:32768")
    a("s_waitcnt vmcnt(0) lgkmcnt(0)")
    a("s_barrier")
    a("v_and_b32 v9, 7, v3")
    a("v_lshlrev_b32 v9, 9, v9")
    a("v_lshl_add_u32 v9, v4, 4, v9")
    a("v_lshrrev_b32 v10, 2, v3")
    a("v_lshl_add_u32 v10, v4, 3, v10")
    a("v_lshlrev_b32 v10, 7, v10")
    a("v_and_b32 v11, 3, v3")
    a("v_lshl_add_u32 v10, v11, 3, v10")
    a("s_lshl_b32 s36, s3, 5")
    a("v_add_u32 v10, s36, v10")
    for s in range(8):
        a(f"ds_read_b128 v[{64+4*s}:{67+4*s}], v9 offset:{32768+64*s}")
        a(f"ds_read_b64_tr_b16 v[{96+4*s}:{97+4*s}], v10 offset:{4096*s}")
        a(f"ds_read_b64_tr_b16 v[{98+4*s}:{99+4*s}], v10 offset:{4096*s+512}")
    a("s_waitcnt lgkmcnt(0)")
    for s in range(8):
        c = "0" if s == 0 else "v[128:131]"
        a(f"v_mfma_f32_16x16x32_bf16 v[128:131], v[{64+4*s}:{67+4*s}], v[{96+4*s}:{99+4*s}], {c}")
    a("v_lshlrev_b32 v9, 10, v4")
    a("v_lshl_add_u32 v9, v3, 2, v9")
    a("s_mul_i32 s36, s31, 23")
    a("s_add_u32 s36, s36, s30")
    a("s_lshl_b32 s36, s36, 11")
    a("s_lshl_b32 s37, s3, 6")
    a("s_add_u32 s36, s36, s37")
    a(f"s_add_u32 s36, s36, {WS_P3}")
    a("s_nop 4")
    a("v_cmp_gt_u32 vcc, 32, v2")
    a("s_and_saveexec_b64 s[42:43], vcc")
    for r in range(4):
        a(f"buffer_store_dword v{128+r}, v9, s[12:15], s36 offen offset:{256*r} sc0 sc1")
    a("s_mov_b64 exec, s[42:43]")
    a("s_waitcnt vmcnt(0)")
    a("s_barrier")
    a("v_cmp_eq_u32 vcc, 0, v0")
    a("s_and_saveexec_b64 s[42:43], vcc")
    a("v_mov_b32 v9, s31")
    a("v_lshlrev_b32 v9, 2, v9")
    a("v_mov_b32 v10, 1")
    a("global_atomic_add v11, v9, v10, s[26:27] sc0")
    a("v_mov_b32 v12, 40960")
    a("s_waitcnt vmcnt(0)")
    a("ds_write_b32 v12, v11")
    a("s_waitcnt lgkmcnt(0)")
    a("s_mov_b64 exec, s[42:43]")
    a("s_barrier")
    a("v_mov_b32 v12, 40960")
    a("ds_read_b32 v11, v12")
    a("s_waitcnt lgkmcnt(0)")
    a("v_readfirstlane_b32 s36, v11")
    a("s_cmp_eq_u32 s36, 22")
    a("s_cbranch_scc0 L3_end")
    srd(a, 4, 16, 7168)
    srd(a, 8, 22, 896)
    srd(a, 44, 24, 7168)
    a("v_lshlrev_b32 v9, 8, v7")
    a("v_lshl_add_u32 v9, v8, 3, v9")
    a(f"s_mul_i32 s36, s31, {23*2048}")
    a(f"s_add_u32 s36, s36, {WS_P3}")
    for ks in range(23):
        a(f"buffer_load_dwordx2 v[{16+2*ks}:{17+2*ks}], v9, s[12:15], s36 offen offset:{(ks&1)*2048} sc0 sc1")
        if ks & 1:
            a("s_add_u32 s36, s36, 4096")
    a("v_mul_u32_u24 v10, 896, v7")
    a("v_lshl_add_u32 v10, v8, 2, v10")
    a("s_lshl_b32 s37, s31, 7")
    a("v_lshlrev_b32 v11, 2, v8")
    a("buffer_load_dword v64, v10, s[4:7], s37 offen")
    a("buffer_load_dword v65, v11, s[8:11], s37 offen")
    a("s_waitcnt vmcnt(0)")
    for ks in range(1, 16):
        a(f"v_add_f32 v16, v16, v{16+2*ks}")
        a(f"v_add_f32 v17, v17, v{17+2*ks}")
    for ks in range(17, 23):
        a(f"v_add_f32 v48, v48, v{16+2*ks}")
        a(f"v_add_f32 v49, v49, v{17+2*ks}")
    round_bf16_pair(a, 16, 17, 12)
    round_bf16_pair(a, 48, 49, 12)
    a("v_lshlrev_b32 v66, 16, v65")
    a("v_and_b32 v67, 0xffff0000, v65")
    a("v_add_f32 v48, v48, v66")
    a("v_add_f32 v49, v49, v67")
    round_bf16_pair(a, 48, 49, 12)
    for r in range(2):
        a(f"v_mul_f32 v12, {f32bits(-LOG2E):#x}, v{48+r}")
        a("v_exp_f32 v12, v12")
        a("s_nop 0")
        a("v_add_f32 v12, 1.0, v12")
        a("v_rcp_f32 v12, v12")
        a("s_nop 0")
        a(f"v_mul_f32 v{48+r}, v{48+r}, v12")
    round_bf16_pair(a, 48, 49, 12)
    a("v_mul_f32 v16, v16, v48")
    a("v_mul_f32 v17, v17, v49")
    round_bf16_pair(a, 16, 17, 12)
    a("v_lshlrev_b32 v66, 16, v64")
    a("v_and_b32 v67, 0xffff0000, v64")
    a("v_add_f32 v16, v16, v66")
    a("v_add_f32 v17, v17, v67")
    a("v_cvt_pk_bf16_f32 v12, v16, v17")
    a("buffer_store_dword v12, v10, s[44:47], s37 offen")
    a.label("L3_end")
    a("s_endpgm")
    kernel_desc(a, name, 132, 56)

def main():
    ap = argparse.ArgumentParser()
    ap.add_argument("-o", default="recurrent_scan__gqa_block_cached__dense_activation_gelu__decode.s")
    ap.add_argument("--nt", action="store_true")
    args = ap.parse_args()
    a = A()
    a.raw(HEADER.rstrip("\n"))
    a.raw("; @launch kernel=proj_kernel grid=(256,1,1) block=(128,1,1) lds=28672")
    a.raw("; @launch kernel=attn_kernel grid=(256,1,1) block=(256,1,1) lds=131072")
    a.raw("; @launch kernel=out_kernel grid=(161,1,1) block=(256,1,1) lds=41088")
    a.raw('.amdgcn_target "amdgcn-amd-amdhsa--gfx950"')
    k1(a)
    k2(a, nt=args.nt)
    k3(a)
    open(args.o, "w").write(a.text())

main()
```

```python
import struct, sys, argparse

def f32bits(x):
    return struct.unpack("<I", struct.pack("<f", x))[0]

LOG2E = 1.4426950408889634
NAME = "recurrent_scan__gqa_block_cached__dense_activation_gelu__decode"
HEADER = open(f"cdna_kernels/{NAME}.s.ref").read().split("; Override launch")[0]

WS_Q = 0x0
WS_H = 0x10000
WS_CTR = 0x1F000
WS_PO = 0x20000
WS_ML = 0xA0000
WS_P3 = 0xB0000
WS_SIZE = 0x40000000
LDS_W = 131072
LDS_XN = 16384
LDS_WQ = 0
LDS_W1 = 131072
LDS_ACT = 4096
SPIN_MAX = 1 << 20

class A:
    def __init__(self):
        self.l = []
    def __call__(self, s):
        self.l.append("    " + s)
    def label(self, s):
        self.l.append(s + ":")
    def raw(self, s):
        self.l.append(s)
    def text(self):
        return "\n".join(self.l) + "\n"

def srd(a, d, p, size):
    a(f"s_mov_b32 s{d}, s{p}")
    a(f"s_and_b32 s{d+1}, s{p+1}, 0xffff")
    a(f"s_mov_b32 s{d+2}, {size:#x}")
    a(f"s_mov_b32 s{d+3}, 0x00020000")

def xlane_reduce_g(a, op, v, t):
    a(f"v_mov_b32 v{t}, v{v}")
    a("s_nop 1")
    a(f"v_permlane16_swap_b32 v{v}, v{t}")
    a("s_nop 1")
    a(f"{op} v{v}, v{v}, v{t}")
    a(f"v_mov_b32 v{t}, v{v}")
    a("s_nop 1")
    a(f"v_permlane32_swap_b32 v{v}, v{t}")
    a("s_nop 1")
    a(f"{op} v{v}, v{v}, v{t}")

def reduce32_add(a, v, t):
    for pat in ("quad_perm:[1,0,3,2]", "quad_perm:[2,3,0,1]", "row_half_mirror", "row_mirror"):
        a("s_nop 1")
        a(f"v_add_f32_dpp v{v}, v{v}, v{v} {pat} row_mask:0xf bank_mask:0xf")
    a(f"v_mov_b32 v{t}, v{v}")
    a("s_nop 1")
    a(f"v_permlane16_swap_b32 v{v}, v{t}")
    a("s_nop 1")
    a(f"v_add_f32 v{v}, v{v}, v{t}")

def round_bf16_pair(a, v0, v1, t):
    a(f"v_cvt_pk_bf16_f32 v{t}, v{v0}, v{v1}")
    a(f"v_lshlrev_b32 v{v0}, 16, v{t}")
    a(f"v_and_b32 v{v1}, 0xffff0000, v{t}")

P_X, P_K, P_V, P_WQ, P_WO, P_W1, P_B1, P_W2, P_B2, P_OUT, P_DBG, P_WS = 64, 66, 68, 70, 72, 76, 78, 80, 82, 84, 86, 88

def gen(pol="nt", stamps=False, nstat=24, psl0=64, psl=12, pace=1):
    a = A()
    def stamp(idx):
        if not stamps:
            return
        a("s_memrealtime s[62:63]")
        a("s_waitcnt lgkmcnt(0)")
        a("v_mov_b32 v222, s62")
        a("v_mov_b32 v223, s63")
        a("s_lshl_b32 s62, s2, 7")
        a(f"s_add_u32 s62, s62, {0x200000 + idx*8}")
        a("v_mov_b32 v221, 0")
        a("s_mov_b64 s[90:91], exec")
        a("s_mov_b64 exec, 1")
        a("buffer_store_dwordx2 v[222:223], v221, s[12:15], s62 offen")
        a("s_mov_b64 exec, s[90:91]")

    a.raw(HEADER.rstrip("\n"))
    a.raw("; @launch grid=(256,1,1) block=(256,1,1) lds=163840")
    a.raw('.amdgcn_target "amdgcn-amd-amdhsa--gfx950"')
    name = NAME + "_kernel"
    a.raw(".text")
    a.raw(f".globl {name}")
    a.raw(".p2align 8")
    a.raw(f".type {name},@function")
    a.label(name)
    pol = (" " + pol) if pol else ""
    QF, ACC, KO, VO, KR, VR, KF, VF, S = 16, 48, 112, 120, 128, 132, 140, 172, 204
    M, L, PB = 208, 209, 220
    TS, WM = 32768, 0xfffff

    a("s_cmp_ge_u32 s2, 256")
    a("s_cbranch_scc1 L_end")
    a("s_load_dwordx16 s[64:79], s[0:1], 0")
    a("s_load_dwordx8 s[80:87], s[0:1], 64")
    a("s_load_dwordx2 s[88:89], s[0:1], 96")
    a("v_lshrrev_b32 v1, 6, v0")
    a("v_and_b32 v2, 63, v0")
    a("v_readfirstlane_b32 s3, v1")
    a("v_and_b32 v3, 15, v2")
    a("v_lshrrev_b32 v4, 4, v2")
    a("v_lshrrev_b32 v5, 5, v2")
    a("v_and_b32 v6, 31, v2")
    a("s_lshl_b32 s23, s2, 20")
    a("s_lshl_b32 s22, s3, 13")
    a("s_add_u32 s23, s23, s22")
    a("s_mov_b32 s22, 0")
    a("s_mov_b32 s27, 0x80000000")
    a("s_lshl_b32 s25, s3, 15")
    for k in range(8):
        a(f"s_add_u32 s{32+k}, s25, {k*4096}")
    a(f"s_mul_i32 s44, s2, {(1<<16)//7+1}")
    a("s_lshr_b32 s44, s44, 16")
    a("s_mul_i32 s45, s44, 7")
    a("s_sub_u32 s45, s2, s45")
    a("s_and_b32 s46, s2, 7")
    a("s_lshr_b32 s47, s2, 3")
    a("v_lshlrev_b32 v8, 9, v5")
    for n in range(8):
        add = 4096 if n >= 4 else 0
        a(f"v_or_b32 v9, {2*n}, v5")
        a("v_xor_b32 v9, v9, v6")
        a(f"v_lshl_add_u32 v{KO+n}, v9, 4, v8")
        if add:
            a(f"v_add_u32 v{KO+n}, {add}, v{KO+n}")
        a(f"v_or_b32 v9, {(2*n)&7}, v5")
        a("v_lshlrev_b32 v9, 1, v9")
        a("v_xor_b32 v9, v9, v6")
        a(f"v_lshl_add_u32 v{VO+n}, v9, 4, v8")
        if add:
            a(f"v_add_u32 v{VO+n}, {add}, v{VO+n}")
    a("v_lshl_add_u32 v7, v1, 1, v5")
    a("v_mul_u32_u24 v7, 896, v7")
    a("v_lshl_add_u32 v7, v6, 2, v7")
    a("s_waitcnt lgkmcnt(0)")
    srd(a, 4, P_K, 0x10000000)
    srd(a, 8, P_V, 0x10000000)
    srd(a, 12, P_WS, WS_SIZE)
    srd(a, 16, P_X, 7168)
    srd(a, 48, P_DBG, 256)

    def issue(kind, slot, soff):
        srdr = "s[4:7]" if kind == "K" else "s[8:11]"
        vo = KO if kind == "K" else VO
        sl = slot + (0 if kind == "K" else 2)
        for half in range(2):
            a(f"s_mov_b32 m0, s{32 + 2*sl + half}")
            a("s_nop 0")
            for q in range(4):
                n = 4*half + q
                off = f" offset:{1024*q}" if q else ""
                a(f"buffer_load_dwordx4 v{vo+n}, {srdr}, {soff} offen{off}{pol} lds")

    def ring_prologue(paced=False, mid=None):
        a("s_add_u32 s26, s23, s22")
        a(f"s_add_u32 s22, s22, {TS}")
        a("s_add_u32 s28, s23, s22")
        a(f"s_add_u32 s22, s22, {TS}")
        if paced and pace == 2:
            issue("K", 0, "s26")
            if mid: mid()
            a("s_waitcnt vmcnt(0)")
            issue("V", 0, "s26")
            a("s_waitcnt vmcnt(0)")
            issue("K", 1, "s28")
            a("s_waitcnt vmcnt(0)")
            issue("V", 1, "s28")
            return
        issue("K", 0, "s26")
        issue("V", 0, "s26")
        if mid: mid()
        if paced and pace: a("s_waitcnt vmcnt(8)")
        issue("K", 1, "s28")
        if paced and pace: a("s_waitcnt vmcnt(8)")
        issue("V", 1, "s28")

    XD, XF = 72, 80
    def x_loads():
        for k in range(7):
            a(f"buffer_load_dword v{XD+k}, v7, s[16:19], 0 offen offset:{128*k}")

    def layernorm():
        for k in range(7):
            a(f"v_lshlrev_b32 v{XF+2*k}, 16, v{XD+k}")
            a(f"v_and_b32 v{XF+2*k+1}, 0xffff0000, v{XD+k}")
        a(f"v_add_f32 v94, v{XF}, v{XF+1}")
        a(f"v_add_f32 v95, v{XF+2}, v{XF+3}")
        for k in range(4, 14, 2):
            a(f"v_add_f32 v94, v94, v{XF+k}")
            a(f"v_add_f32 v95, v95, v{XF+k+1}")
        a("v_add_f32 v94, v94, v95")
        reduce32_add(a, 94, 95)
        a(f"v_mul_f32 v94, {f32bits(1.0/448):#x}, v94")
        a(f"v_sub_f32 v96, v{XF}, v94")
        a("v_mul_f32 v97, v96, v96")
        a(f"v_sub_f32 v96, v{XF+1}, v94")
        a("v_mul_f32 v98, v96, v96")
        for k in range(2, 14):
            a(f"v_sub_f32 v96, v{XF+k}, v94")
            a(f"v_fmac_f32 v{97+(k&1)}, v96, v96")
        a("v_add_f32 v97, v97, v98")
        reduce32_add(a, 97, 95)
        a(f"v_mul_f32 v97, {f32bits(1.0/448):#x}, v97")
        round_bf16_pair(a, 94, 97, 95)
        a(f"v_add_f32 v97, {f32bits(1e-5):#x}, v97")
        round_bf16_pair(a, 97, 96, 95)
        a("v_sqrt_f32 v97, v97")
        a("s_nop 0")
        round_bf16_pair(a, 97, 96, 95)
        a("v_rcp_f32 v98, v97")
        a("s_nop 0")
        for k in range(7):
            f0, f1 = XF+2*k, XF+2*k+1
            a(f"v_sub_f32 v{f0}, v{f0}, v94")
            a(f"v_sub_f32 v{f1}, v{f1}, v94")
            round_bf16_pair(a, f0, f1, 95)
            a(f"v_mul_f32 v96, v{f0}, v98")
            a(f"v_mul_f32 v99, v{f1}, v98")
            a(f"v_fma_f32 v{f0}, -v96, v97, v{f0}")
            a(f"v_fma_f32 v{f1}, -v99, v97, v{f1}")
            a(f"v_fmac_f32 v96, v{f0}, v98")
            a(f"v_fmac_f32 v99, v{f1}, v98")
            a(f"v_cvt_pk_bf16_f32 v{XD+k}, v96, v99")
        for k in range(7):
            a(f"ds_write_b32 v7, v{XD+k} offset:{LDS_XN+128*k}")
        a("s_waitcnt lgkmcnt(0)")

    def proj_dma(is_h):
        stride = 3584 if is_h else 8192
        ldsbase = LDS_W1 if is_h else LDS_WQ
        srd(a, 92, P_W1 if is_h else P_WQ, 448*stride)
        if is_h:
            a("s_mul_i32 s54, s46, 14")
        else:
            a("s_lshl_b32 s54, s46, 5")
        a("s_add_u32 s54, s54, s47")
        a("s_lshl_b32 s55, s54, 5")
        a("v_lshrrev_b32 v10, 1, v2")
        a(f"v_mul_u32_u24 v10, {stride}, v10")
        a("v_and_b32 v11, 1, v2")
        a("v_lshl_add_u32 v10, v11, 4, v10")
        a("s_mov_b32 s56, s55")
        for n in range(14):
            a(f"s_mov_b32 m0, {ldsbase + n*1024}")
            a("s_nop 0")
            a("buffer_load_dwordx4 v10, s[92:95], s56 offen lds")
            if n < 13:
                a(f"s_add_u32 s56, s56, {32*stride}")
        if is_h:
            srd(a, 28, P_B1, 3584)
            a("v_lshlrev_b32 v11, 1, v3")
            a("buffer_load_ushort v104, v11, s[28:31], s55 offen")

    XA, B, D = 140, 48, 196
    def proj_areads():
        a("v_and_b32 v10, 7, v3")
        a("v_mul_u32_u24 v10, 896, v10")
        a("v_lshl_add_u32 v10, v4, 4, v10")
        for s in range(14):
            a(f"ds_read_b128 v[{XA+4*s}:{XA+4*s+3}], v10 offset:{LDS_XN+64*s}")
        a("s_waitcnt lgkmcnt(0)")

    def h_store_addr():
        a("v_lshrrev_b32 v105, 2, v2")
        a("v_mul_u32_u24 v105, 7168, v105")
        a("v_and_b32 v106, 3, v2")
        a("v_lshl_add_u32 v105, v106, 4, v105")
        a("s_mul_i32 s57, s46, 14")
        a("s_add_u32 s57, s57, s47")
        a("s_lshl_b32 s57, s57, 6")
        a(f"s_add_u32 s57, s57, {WS_H}")

    def proj_gemm(is_h):
        ldsbase = LDS_W1 if is_h else LDS_WQ
        T = (16384 if is_h else 24576)
        lb = 0
        a("v_lshrrev_b32 v11, 2, v3")
        a("v_lshl_add_u32 v11, v4, 3, v11")
        a("v_lshlrev_b32 v11, 5, v11")
        a("v_and_b32 v12, 3, v3")
        a("v_lshl_add_u32 v11, v12, 3, v11")
        if is_h:
            a(f"v_add_u32 v11, {ldsbase}, v11")
        a(f"s_waitcnt vmcnt({8 if is_h else 0})")
        if not is_h:
            stamp(3)
        for s in range(14):
            a(f"ds_read_b64_tr_b16 v[{B+4*s}:{B+4*s+1}], v11 offset:{lb+1024*s}")
            a(f"ds_read_b64_tr_b16 v[{B+4*s+2}:{B+4*s+3}], v11 offset:{lb+1024*s+128}")
        a("s_waitcnt lgkmcnt(0)")
        for s in range(14):
            c = "0" if s == 0 else f"v[{D}:{D+3}]"
            a(f"v_mfma_f32_16x16x32_bf16 v[{D}:{D+3}], v[{XA+4*s}:{XA+4*s+3}], v[{B+4*s}:{B+4*s+3}], {c}")
        if is_h:
            a("v_lshlrev_b32 v10, 8, v4")
            a("v_lshl_add_u32 v10, v3, 2, v10")
            a(f"v_add_u32 v10, {ldsbase}, v10")
        else:
            a("v_lshlrev_b32 v10, 7, v4")
            a("v_lshl_add_u32 v10, v3, 1, v10")
        a("v_lshlrev_b32 v13, 4, v2")
        if is_h:
            a(f"v_add_u32 v13, {ldsbase}, v13")
        a("s_nop 7")
        if is_h:
            a("v_lshlrev_b32 v104, 16, v104")
            for p in range(2):
                round_bf16_pair(a, D+2*p, D+2*p+1, 11)
            for r in range(4):
                a(f"v_add_f32 v{D+r}, v{D+r}, v104")
            for p in range(2):
                round_bf16_pair(a, D+2*p, D+2*p+1, 11)
            kk = -2.0 * LOG2E * 0.7978845608028654
            for r in range(4):
                x = D + r
                a(f"v_mul_f32 v12, v{x}, v{x}")
                a(f"v_mul_f32 v12, {f32bits(0.044715):#x}, v12")
                a(f"v_fma_f32 v12, v12, v{x}, v{x}")
                a(f"v_mul_f32 v12, {f32bits(kk):#x}, v12")
                a("v_exp_f32 v12, v12")
                a("s_nop 0")
                a("v_add_f32 v12, 1.0, v12")
                a("v_rcp_f32 v12, v12")
                a("s_nop 0")
                a(f"v_mul_f32 v{x}, v{x}, v12")
            for p in range(2):
                round_bf16_pair(a, D+2*p, D+2*p+1, 11)
            for r in range(4):
                a(f"v_or_b32 v{D+r}, 1, v{D+r}")
            a("v_cmp_gt_u32 vcc, 32, v2")
            a("s_and_saveexec_b64 s[60:61], vcc")
            for r in range(4):
                a(f"ds_write_b32 v10, v{D+r} offset:{T+64*r}")
            a("s_waitcnt lgkmcnt(0)")
            a(f"ds_read_b128 v[{D}:{D+3}], v13 offset:{T}")
            a("s_waitcnt lgkmcnt(0)")
            a(f"buffer_store_dwordx4 v[{D}:{D+3}], v105, s[12:15], s57 offen sc0 sc1")
            a("s_mov_b64 exec, s[60:61]")
        else:
            a(f"v_cvt_pk_bf16_f32 v12, v{D}, v{D+1}")
            a(f"v_cvt_pk_bf16_f32 v14, v{D+2}, v{D+3}")
            a("v_cmp_gt_u32 vcc, 32, v2")
            a("s_and_saveexec_b64 s[60:61], vcc")
            a(f"ds_write_b16 v10, v12 offset:{T}")
            a(f"ds_write_b16_d16_hi v10, v12 offset:{T+32}")
            a(f"ds_write_b16 v10, v14 offset:{T+64}")
            a(f"ds_write_b16_d16_hi v10, v14 offset:{T+96}")
            a("s_mov_b64 exec, s[60:61]")
            a("v_lshrrev_b32 v11, 1, v2")
            a("v_lshlrev_b32 v11, 13, v11")
            a("v_and_b32 v12, 1, v2")
            a("v_lshl_add_u32 v11, v12, 4, v11")
            a("v_cmp_gt_u32 vcc, 16, v2")
            a("s_and_saveexec_b64 s[60:61], vcc")
            a("s_waitcnt lgkmcnt(0)")
            a(f"ds_read_b128 v[{D}:{D+3}], v13 offset:{T}")
            a("s_waitcnt lgkmcnt(0)")
            a(f"buffer_store_dwordx4 v[{D}:{D+3}], v11, s[12:15], s55 offen sc0 sc1")
            a("s_mov_b64 exec, s[60:61]")
            if stamps:
                a("s_memrealtime s[90:91]")
                a("s_waitcnt lgkmcnt(0)")
                a("v_mov_b32 v218, s90")
                a("v_mov_b32 v219, s91")
            a("s_waitcnt vmcnt(0)")
            if stamps:
                a("s_lshl_b32 s62, s2, 7")
                a(f"s_add_u32 s62, s62, {0x200000 + 11*8}")
                a("v_mov_b32 v221, 0")
                a("s_mov_b64 exec, 1")
                a("buffer_store_dwordx2 v[218:219], v221, s[12:15], s62 offen")
                a("s_mov_b64 exec, -1")

    a("s_cmp_eq_u32 s3, 0")
    a("s_cbranch_scc1 L_w0")
    a("s_cmp_eq_u32 s3, 1")
    a("s_cbranch_scc1 L_w1")
    a("s_cmp_eq_u32 s3, 2")
    a("s_cbranch_scc1 L_w2")
    def role_dma(tag):
        a("s_cmp_ge_u32 s2, 161")
        a(f"s_cbranch_scc1 L_rd_done{tag}")
        a("v_lshrrev_b32 v10, 3, v2")
        a("v_mul_u32_u24 v10, 896, v10")
        a("v_and_b32 v11, 7, v2")
        a("v_lshl_add_u32 v10, v11, 4, v10")
        a("s_lshl_b32 s54, s45, 7")
        a("s_cmp_ge_u32 s44, 16")
        a(f"s_cbranch_scc1 L_rd_ffn{tag}")
        srd(a, 92, P_WO, 4096*896)
        a(f"s_mul_i32 s55, s44, {256*896}")
        a("s_add_u32 s54, s54, s55")
        for n in range(32):
            a(f"s_mov_b32 m0, {LDS_W + n*1024}")
            a("s_nop 0")
            a("buffer_load_dwordx4 v10, s[92:95], s54 offen lds")
            if n < 31:
                a(f"s_add_u32 s54, s54, {8*896}")
        a(f"s_branch L_rd_done{tag}")
        a.label(f"L_rd_ffn{tag}")
        srd(a, 92, P_W2, 1792*896)
        a("s_sub_u32 s55, s44, 16")
        a(f"s_mul_i32 s55, s55, {256*896}")
        a("s_add_u32 s54, s54, s55")
        for n in range(32):
            a(f"s_mov_b32 m0, {LDS_W + n*1024}")
            a("s_nop 0")
            a("buffer_load_dwordx4 v10, s[92:95], s54 offen lds")
            if n < 31:
                a(f"s_add_u32 s54, s54, {8*896}")
        a.label(f"L_rd_done{tag}")

    def q_loads():
        a("s_lshr_b32 s24, s2, 2")
        a("s_lshl_b32 s24, s24, 10")
        a("v_and_b32 v7, 1, v3")
        a("v_lshlrev_b32 v7, 9, v7")
        a("v_lshl_add_u32 v7, v4, 4, v7")
        for s in range(8):
            a(f"buffer_load_dwordx4 v[{QF+4*s}:{QF+4*s+3}], v7, s[12:15], s24 offen offset:{64*s} sc0 sc1")

    def zero16():
        for r in range(16, 20):
            a(f"v_mov_b32 v{r}, 0")

    zero16()
    a("v_lshlrev_b32 v10, 4, v2")
    a("s_cmp_ge_u32 s2, 161")
    a("s_cbranch_scc1 L_w3_noclr")
    a("s_mul_i32 s54, s45, 23")
    a("s_add_u32 s54, s54, s44")
    a("s_lshl_b32 s54, s54, 11")
    a(f"s_add_u32 s54, s54, {WS_P3}")
    a("buffer_store_dwordx4 v[16:19], v10, s[12:15], s54 offen sc0 sc1")
    a("buffer_store_dwordx4 v[16:19], v10, s[12:15], s54 offen offset:1024 sc0 sc1")
    a.label("L_w3_noclr")
    x_loads()
    a("s_waitcnt vmcnt(0)")
    layernorm()
    a("s_barrier")
    ring_prologue(True, lambda: a("s_barrier"))
    a("s_barrier")
    q_loads()
    a("s_branch L_join")
    a.label("L_w2")
    zero16()
    a("v_lshlrev_b32 v10, 4, v2")
    a("s_lshl_b32 s54, s2, 11")
    a(f"s_add_u32 s54, s54, {WS_PO}")
    a("buffer_store_dwordx4 v[16:19], v10, s[12:15], s54 offen sc0 sc1")
    a("buffer_store_dwordx4 v[16:19], v10, s[12:15], s54 offen offset:1024 sc0 sc1")
    a("s_lshl_b32 s54, s2, 4")
    a(f"s_add_u32 s54, s54, {WS_ML}")
    a("v_cmp_eq_u32 vcc, 0, v2")
    a("s_and_saveexec_b64 s[60:61], vcc")
    a("buffer_store_dwordx4 v[16:19], v10, s[12:15], s54 offen sc0 sc1")
    a("s_and_b32 s54, s2, 3")
    a("s_cmp_lg_u32 s54, 0")
    a("s_cbranch_scc1 L_w2_noctr")
    a("s_lshl_b32 s54, s2, 4")
    a(f"s_add_u32 s54, s54, {WS_CTR}")
    a("buffer_store_dwordx4 v[16:19], v10, s[12:15], s54 offen sc0 sc1")
    a.label("L_w2_noctr")
    a("s_mov_b64 exec, s[60:61]")
    x_loads()
    a("s_waitcnt vmcnt(0)")
    layernorm()
    a("s_barrier")
    ring_prologue(True, lambda: a("s_barrier"))
    a("v_and_b32 v10, 7, v2")
    a("v_lshlrev_b32 v10, 5, v10")
    a("s_mov_b32 s54, 0")
    a(f"s_sleep {psl0}")
    a.label("L_poll_q")
    a("buffer_load_dword v11, v10, s[48:51], 0 offen sc0 sc1")
    a("s_waitcnt vmcnt(0)")
    a("v_cmp_ne_u32 vcc, 32, v11")
    a("s_cbranch_vccz L_poll_q_done")
    a("s_add_u32 s54, s54, 1")
    a(f"s_cmp_ge_u32 s54, {SPIN_MAX}")
    a("s_cbranch_scc1 L_poll_q_done")
    a(f"s_sleep {psl}")
    a("s_branch L_poll_q")
    a.label("L_poll_q_done")
    a("s_barrier")
    q_loads()
    a("s_branch L_join")
    a.label("L_w1")
    a("s_cmp_ge_u32 s47, 14")
    a("s_cbranch_scc1 L_w1_noh")
    h_store_addr()
    zero16()
    a("v_cmp_gt_u32 vcc, 32, v2")
    a("s_and_saveexec_b64 s[60:61], vcc")
    a("buffer_store_dwordx4 v[16:19], v105, s[12:15], s57 offen sc0 sc1")
    a("s_mov_b64 exec, s[60:61]")
    x_loads()
    a("s_waitcnt vmcnt(0)")
    layernorm()
    a("s_barrier")
    proj_areads()
    a("s_barrier")
    ring_prologue(True)
    proj_dma(True)
    a("s_barrier")
    q_loads()
    proj_gemm(True)
    a("s_waitcnt vmcnt(1)")
    role_dma("a")
    a("s_branch L_join2")
    a.label("L_w1_noh")
    x_loads()
    a("s_waitcnt vmcnt(0)")
    layernorm()
    a("s_barrier")
    a("s_barrier")
    ring_prologue(True)
    a("s_barrier")
    q_loads()
    a("s_waitcnt vmcnt(0)")
    role_dma("b")
    a("s_branch L_join2")
    a.label("L_w0")
    stamp(0)
    x_loads()
    proj_dma(False)
    a("s_waitcnt vmcnt(14)")
    layernorm()
    a("s_barrier")
    stamp(1)
    proj_areads()
    a("s_barrier")
    proj_gemm(False)
    a("s_lshl_b32 s54, s46, 5")
    a("v_mov_b32 v10, s54")
    a("v_mov_b32 v11, 1")
    a("v_cmp_eq_u32 vcc, 0, v2")
    a("s_and_saveexec_b64 s[60:61], vcc")
    a("buffer_atomic_add v11, v10, s[48:51], 0 offen")
    a("s_mov_b64 exec, s[60:61]")
    stamp(2)
    ring_prologue()
    a("s_barrier")
    stamp(4)
    q_loads()
    a.label("L_join")
    a("s_waitcnt vmcnt(0)")
    a.label("L_join2")
    a("v_xor_b32 v9, v4, v3")
    a("v_and_b32 v9, 3, v9")
    a("v_and_b32 v10, 12, v3")
    a("v_lshlrev_b32 v11, 9, v3")
    a("v_add_u32 v11, s25, v11")
    for q in range(4):
        a(f"v_xor_b32 v12, {4*q}, v10")
        a("v_add_u32 v12, v12, v9")
        a(f"v_lshl_add_u32 v{KR+q}, v12, 4, v11")
    a("v_lshrrev_b32 v9, 2, v3")
    a("v_lshl_add_u32 v9, v4, 2, v9")
    a("v_lshlrev_b32 v11, 9, v9")
    a("v_add_u32 v11, s25, v11")
    a("v_add_u32 v11, 16384, v11")
    a("v_and_b32 v10, 1, v3")
    a("v_lshl_add_u32 v11, v10, 3, v11")
    a("v_bfe_u32 v10, v3, 1, 1")
    a("v_lshl_add_u32 v11, v10, 4, v11")
    a("v_and_b32 v9, 7, v9")
    for nn in range(8):
        a(f"v_xor_b32 v12, {nn}, v9")
        a(f"v_lshl_add_u32 v{VR+nn}, v12, 5, v11")
    for k in range(64):
        a(f"v_mov_b32 v{ACC+k}, 0")
    a(f"v_mov_b32 v{M}, 0xf149f2ca")
    a(f"v_mov_b32 v{L}, 0")
    a(f"s_mov_b32 s30, {f32bits(LOG2E/16):#x}")
    a("s_mov_b32 s24, 0")
    if stamps:
        a("s_cmp_lg_u32 s3, 0")
        a("s_cbranch_scc1 L_st5")
        stamp(5)
        a.label("L_st5")
    a("s_lshr_b32 s31, s2, 2")
    a("s_lshl_b32 s99, s31, 6")
    a(f"s_add_u32 s99, s99, {WS_CTR}")
    a(f"s_add_u32 s96, s{P_WS}, s99")
    a(f"s_addc_u32 s97, s{P_WS+1}, 0")
    a("s_lshl_b32 s31, s31, 22")
    a("s_mov_b32 s99, 1")
    a("s_mov_b32 s100, 1")
    a("s_mov_b32 s98, 0")
    a.label("L_loop")
    for slot in range(2):
        so = slot * 8192
        a(f"s_cmp_eq_u32 s{99+slot}, 0")
        a("s_cbranch_scc1 L_loop_done")
        a("s_waitcnt vmcnt(24)")
        for s in range(8):
            a(f"ds_read_b128 v[{KF+4*s}:{KF+4*s+3}], v{KR+(s&3)} offset:{so + (s>>2)*256}")
        for s in range(8):
            a(f"s_waitcnt lgkmcnt({7-s})")
            c = "0" if s == 0 else f"v[{S}:{S+3}]"
            a(f"v_mfma_f32_16x16x32_bf16 v[{S}:{S+3}], v[{KF+4*s}:{KF+4*s+3}], v[{QF+4*s}:{QF+4*s+3}], {c}")
        a(f"s_cmp_lt_u32 s24, {nstat-2}")
        a(f"s_cbranch_scc0 L_dyn{slot}")
        a("s_add_u32 s29, s23, s22")
        a(f"s_add_u32 s22, s22, {TS}")
        a(f"s_branch L_dynd{slot}")
        a.label(f"L_dyn{slot}")
        a("s_lshr_b32 s26, s98, 5") if (32-nstat)*4 == 32 else a(f"s_lshr_b32 s26, s98, {((32-nstat)*4).bit_length()-1}")
        a("s_lshl_b32 s26, s26, 7")
        a(f"s_and_b32 s28, s98, {(32-nstat)*4-1}")
        a("s_add_u32 s26, s26, s28")
        a(f"s_add_u32 s26, s26, {nstat*4}")
        a("s_lshl_b32 s26, s26, 13")
        a("s_add_u32 s26, s26, s31")
        a(f"s_cmp_lt_u32 s98, {(32-nstat)*16}")
        a("s_cselect_b32 s29, s26, s27")
        a(f"s_cselect_b32 s{99+slot}, 1, 0")
        a.label(f"L_dynd{slot}")
        issue("K", slot, "s29")
        round_bf16_pair(a, S, S+1, 210)
        round_bf16_pair(a, S+2, S+3, 211)
        a(f"v_max3_f32 v212, v{S}, v{S+1}, v{S+2}")
        a(f"v_max_f32 v212, v212, v{S+3}")
        xlane_reduce_g(a, "v_max_f32", 212, 213)
        a(f"v_max_f32 v212, v212, v{M}")
        a(f"v_sub_f32 v213, v{M}, v212")
        a(f"v_mov_b32 v{M}, v212")
        a("v_mul_f32 v213, s30, v213")
        for r in range(4):
            a(f"v_sub_f32 v{S+r}, v{S+r}, v212")
        a("v_exp_f32 v213, v213")
        for r in range(4):
            a(f"v_mul_f32 v{S+r}, s30, v{S+r}")
        for r in range(4):
            a(f"v_exp_f32 v{S+r}, v{S+r}")
        a("s_nop 0")
        a(f"v_add_f32 v214, v{S}, v{S+1}")
        a(f"v_add_f32 v215, v{S+2}, v{S+3}")
        a(f"v_cvt_pk_bf16_f32 v{PB}, v{S}, v{S+1}")
        a(f"v_cvt_pk_bf16_f32 v{PB+1}, v{S+2}, v{S+3}")
        a("v_add_f32 v214, v214, v215")
        a(f"v_fma_f32 v{L}, v{L}, v213, v214")
        for k in range(64):
            a(f"v_mul_f32 v{ACC+k}, v213, v{ACC+k}")
        a("s_waitcnt vmcnt(24)")
        for n in range(16):
            a(f"ds_read_b64_tr_b16 v[{VF+2*n}:{VF+2*n+1}], v{VR+(n&7)} offset:{so + (n>>3)*256}")
        for n in range(16):
            a(f"s_waitcnt lgkmcnt({15-n})")
            a(f"v_mfma_f32_16x16x16_bf16 v[{ACC+4*n}:{ACC+4*n+3}], v[{VF+2*n}:{VF+2*n+1}], v[{PB}:{PB+1}], v[{ACC+4*n}:{ACC+4*n+3}]")
        issue("V", slot, "s29")
        a("s_add_u32 s24, s24, 1")
        a(f"s_cmp_lt_u32 s24, {nstat-2}")
        a(f"s_cbranch_scc1 L_nocl{slot}")
        a("s_mov_b32 s98, 1")
        a("s_atomic_add s98, s[96:97], 0x0 glc")
        a.label(f"L_nocl{slot}")
    a("s_branch L_loop")
    a.label("L_loop_done")
    a("s_waitcnt lgkmcnt(0)")
    if stamps:
        a("s_cmp_lg_u32 s3, 0")
        a("s_cbranch_scc1 L_st6")
        stamp(6)
        a.label("L_st6")
    xlane_reduce_g(a, "v_add_f32", L, 213)
    a("s_waitcnt vmcnt(0)")
    a("v_lshlrev_b32 v9, 10, v3")
    a("v_lshl_add_u32 v9, v4, 4, v9")
    a("v_add_u32 v9, s25, v9")
    a("v_lshlrev_b32 v10, 3, v3")
    a("v_add_u32 v10, s25, v10")
    a("v_cmp_gt_u32 vcc, 2, v3")
    a("s_and_saveexec_b64 s[40:41], vcc")
    for n in range(16):
        a(f"ds_write_b128 v9, v[{ACC+4*n}:{ACC+4*n+3}] offset:{64*n}")
    a(f"ds_write_b64 v10, v[{M}:{L}] offset:2048")
    a("s_mov_b64 exec, s[40:41]")
    a("s_waitcnt lgkmcnt(0)")
    a("s_barrier")
    a("v_lshrrev_b32 v9, 7, v0")
    a("v_and_b32 v10, 127, v0")
    a("v_lshlrev_b32 v11, 3, v9")
    a("v_lshlrev_b32 v12, 10, v9")
    a("v_lshl_add_u32 v12, v10, 3, v12")
    a("v_add_u32 v13, 0x10000, v11")
    a("v_add_u32 v14, 0x10000, v12")
    for w in range(4):
        a(f"ds_read_b64 v[{20+2*w}:{21+2*w}], v{11 if w < 2 else 13} offset:{(w&1)*32768+2048}")
    for w in range(4):
        a(f"ds_read_b64 v[{30+2*w}:{31+2*w}], v{12 if w < 2 else 14} offset:{(w&1)*32768}")
    a("s_waitcnt lgkmcnt(0)")
    a("v_max3_f32 v40, v20, v22, v24")
    a("v_max_f32 v40, v40, v26")
    for w in range(4):
        a(f"v_sub_f32 v{20+2*w}, v{20+2*w}, v40")
        a(f"v_mul_f32 v{20+2*w}, s30, v{20+2*w}")
        a(f"v_exp_f32 v{20+2*w}, v{20+2*w}")
    a("s_nop 0")
    a("v_mul_f32 v41, v20, v21")
    a("v_mul_f32 v42, v20, v30")
    a("v_mul_f32 v43, v20, v31")
    for w in range(1, 4):
        a(f"v_fmac_f32 v41, v{20+2*w}, v{21+2*w}")
        a(f"v_fmac_f32 v42, v{20+2*w}, v{30+2*w}")
        a(f"v_fmac_f32 v43, v{20+2*w}, v{31+2*w}")
    for r in range(40, 44):
        a(f"v_or_b32 v{r}, 1, v{r}")
    a("s_lshl_b32 s24, s2, 11")
    a(f"s_add_u32 s24, s24, {WS_PO}")
    a("buffer_store_dwordx2 v[42:43], v12, s[12:15], s24 offen sc0 sc1")
    a("s_lshl_b32 s24, s2, 4")
    a(f"s_add_u32 s24, s24, {WS_ML}")
    a("v_cmp_eq_u32 vcc, 0, v10")
    a("s_and_saveexec_b64 s[40:41], vcc")
    a("buffer_store_dwordx2 v[40:41], v11, s[12:15], s24 offen sc0 sc1")
    a("s_mov_b64 exec, s[40:41]")
    if stamps:
        a("s_cmp_lg_u32 s3, 0")
        a("s_cbranch_scc1 L_st7")
        stamp(7)
        a.label("L_st7")
    a("v_lshrrev_b32 v7, 5, v0")
    a("v_and_b32 v8, 31, v0")
    a("s_cmp_ge_u32 s2, 168")
    a("s_cbranch_scc1 L_end")
    a("s_cmp_ge_u32 s2, 161")
    a("s_cbranch_scc1 L_final")
    a("s_cmp_ge_u32 s44, 16")
    a("s_cbranch_scc1 L_r_ffn")
    a("v_lshlrev_b32 v9, 16, v7")
    a("v_lshl_add_u32 v9, v8, 5, v9")
    a("s_lshr_b32 s54, s44, 1")
    a("s_lshl_b32 s54, s54, 13")
    a("s_and_b32 s55, s44, 1")
    a("s_lshl_b32 s56, s55, 10")
    a("s_add_u32 s54, s54, s56")
    a(f"s_add_u32 s54, s54, {WS_PO}")
    a("s_add_u32 s57, s54, 4096")
    a("v_lshlrev_b32 v10, 9, v7")
    a("s_lshr_b32 s58, s44, 1")
    a("s_lshl_b32 s58, s58, 6")
    a("s_lshl_b32 s56, s55, 3")
    a("s_add_u32 s58, s58, s56")
    a(f"s_add_u32 s58, s58, {WS_ML}")
    a("s_mov_b32 s59, 0")
    a.label("L_poll_p")
    for sp in range(4):
        so_ = "s54" if sp < 2 else "s57"
        a(f"buffer_load_dwordx4 v[{16+8*sp}:{19+8*sp}], v9, s[12:15], {so_} offen offset:{(sp&1)*2048} sc0 sc1")
        a(f"buffer_load_dwordx4 v[{20+8*sp}:{23+8*sp}], v9, s[12:15], {so_} offen offset:{(sp&1)*2048+16} sc0 sc1")
    for sp in range(4):
        a(f"buffer_load_dwordx2 v[{48+2*sp}:{49+2*sp}], v10, s[12:15], s58 offen offset:{sp*16} sc0 sc1")
    a("s_waitcnt vmcnt(0)")
    a("v_and_b32 v56, v16, v17")
    a("v_and_b32 v57, v18, v19")
    for r in range(20, 56, 2):
        a(f"v_and_b32 v56, v56, v{r}")
        a(f"v_and_b32 v57, v57, v{r+1}")
    a("v_and_b32 v56, v56, v57")
    a("v_and_b32 v56, 1, v56")
    a("v_cmp_eq_u32 vcc, 0, v56")
    a("s_cbranch_vccz L_poll_p_done")
    a("s_add_u32 s59, s59, 1")
    a(f"s_cmp_ge_u32 s59, {SPIN_MAX}")
    a("s_cbranch_scc1 L_poll_p_done")
    a("s_sleep 2")
    a("s_branch L_poll_p")
    a.label("L_poll_p_done")
    a("v_max3_f32 v56, v48, v50, v52")
    a("v_max_f32 v56, v56, v54")
    for sp in range(4):
        a(f"v_sub_f32 v{48+2*sp}, v{48+2*sp}, v56")
        a(f"v_mul_f32 v{48+2*sp}, s30, v{48+2*sp}")
        a(f"v_exp_f32 v{48+2*sp}, v{48+2*sp}")
    a("s_nop 0")
    a("v_mul_f32 v57, v48, v49")
    for sp in range(1, 4):
        a(f"v_fmac_f32 v57, v{48+2*sp}, v{49+2*sp}")
    a("v_rcp_f32 v57, v57")
    a("s_nop 0")
    for sp in range(4):
        a(f"v_mul_f32 v{48+2*sp}, v{48+2*sp}, v57")
    for e in range(8):
        a(f"v_mul_f32 v{16+e}, v48, v{16+e}")
        for sp in range(1, 4):
            a(f"v_fmac_f32 v{16+e}, v{48+2*sp}, v{16+8*sp+e}")
    for p in range(4):
        a(f"v_cvt_pk_bf16_f32 v{60+p}, v{16+2*p}, v{17+2*p}")
    a("s_branch L_r_act")
    a.label("L_r_ffn")
    a("v_mul_u32_u24 v9, 7168, v7")
    a("v_lshl_add_u32 v9, v8, 5, v9")
    a("s_sub_u32 s54, s44, 16")
    a("s_lshl_b32 s54, s54, 10")
    a(f"s_add_u32 s54, s54, {WS_H}")
    a("s_mov_b32 s59, 0")
    a.label("L_poll_h")
    a("buffer_load_dwordx4 v[16:19], v9, s[12:15], s54 offen sc0 sc1")
    a("buffer_load_dwordx4 v[20:23], v9, s[12:15], s54 offen offset:16 sc0 sc1")
    a("s_waitcnt vmcnt(0)")
    a("v_and_b32 v56, v16, v17")
    a("v_and_b32 v57, v18, v19")
    a("v_and_b32 v56, v56, v20")
    a("v_and_b32 v57, v57, v21")
    a("v_and_b32 v56, v56, v22")
    a("v_and_b32 v57, v57, v23")
    a("v_and_b32 v56, v56, v57")
    a("v_and_b32 v56, 1, v56")
    a("v_cmp_eq_u32 vcc, 0, v56")
    a("s_cbranch_vccz L_poll_h_done")
    a("s_add_u32 s59, s59, 1")
    a(f"s_cmp_ge_u32 s59, {SPIN_MAX}")
    a("s_cbranch_scc1 L_poll_h_done")
    a("s_sleep 2")
    a("s_branch L_poll_h")
    a.label("L_poll_h_done")
    for p in range(4):
        a(f"v_cvt_pk_bf16_f32 v{60+p}, v{16+2*p}, v{17+2*p}")
    a.label("L_r_act")
    if stamps:
        a("s_cmp_lg_u32 s3, 0")
        a("s_cbranch_scc1 L_st8")
        stamp(8)
        a.label("L_st8")
    a("v_lshlrev_b32 v9, 9, v7")
    a("v_lshl_add_u32 v9, v8, 4, v9")
    a(f"ds_write_b128 v9, v[60:63] offset:{LDS_ACT}")
    a("s_waitcnt lgkmcnt(0)")
    a("s_barrier")
    a("v_and_b32 v9, 7, v3")
    a("v_lshlrev_b32 v9, 9, v9")
    a("v_lshl_add_u32 v9, v4, 4, v9")
    a("v_lshrrev_b32 v10, 2, v3")
    a("v_lshl_add_u32 v10, v4, 3, v10")
    a("v_lshlrev_b32 v10, 7, v10")
    a("v_and_b32 v11, 3, v3")
    a("v_lshl_add_u32 v10, v11, 3, v10")
    a("s_lshl_b32 s54, s3, 5")
    a(f"s_add_u32 s54, s54, {LDS_W}")
    a("v_add_u32 v10, s54, v10")
    for s in range(8):
        a(f"ds_read_b128 v[{64+4*s}:{67+4*s}], v9 offset:{LDS_ACT+64*s}")
        a(f"ds_read_b64_tr_b16 v[{96+4*s}:{97+4*s}], v10 offset:{4096*s}")
        a(f"ds_read_b64_tr_b16 v[{98+4*s}:{99+4*s}], v10 offset:{4096*s+512}")
    a("s_waitcnt lgkmcnt(0)")
    for s in range(8):
        c = "0" if s == 0 else "v[128:131]"
        a(f"v_mfma_f32_16x16x32_bf16 v[128:131], v[{64+4*s}:{67+4*s}], v[{96+4*s}:{99+4*s}], {c}")
    a("v_lshlrev_b32 v9, 10, v4")
    a("v_lshl_add_u32 v9, v3, 2, v9")
    a("s_mul_i32 s54, s45, 23")
    a("s_add_u32 s54, s54, s44")
    a("s_lshl_b32 s54, s54, 11")
    a("s_lshl_b32 s55, s3, 6")
    a("s_add_u32 s54, s54, s55")
    a(f"s_add_u32 s54, s54, {WS_P3}")
    a("s_nop 4")
    for r in range(4):
        a(f"v_or_b32 v{128+r}, 1, v{128+r}")
    a("v_cmp_gt_u32 vcc, 32, v2")
    a("s_and_saveexec_b64 s[40:41], vcc")
    for r in range(4):
        a(f"buffer_store_dword v{128+r}, v9, s[12:15], s54 offen offset:{256*r} sc0 sc1")
    a("s_mov_b64 exec, s[40:41]")
    if stamps:
        a("s_cmp_lg_u32 s3, 0")
        a("s_cbranch_scc1 L_st9")
        stamp(9)
        a.label("L_st9")
    a("s_endpgm")
    a.label("L_final")
    a("s_sub_u32 s45, s2, 161")
    srd(a, 20, P_B2, 896)
    srd(a, 28, P_OUT, 7168)
    a("v_lshlrev_b32 v9, 8, v7")
    a("v_lshl_add_u32 v9, v8, 3, v9")
    a("v_mul_u32_u24 v10, 896, v7")
    a("v_lshl_add_u32 v10, v8, 2, v10")
    a("s_lshl_b32 s57, s45, 7")
    a("v_lshlrev_b32 v11, 2, v8")
    a("buffer_load_dword v64, v10, s[16:19], s57 offen")
    a("buffer_load_dword v65, v11, s[20:23], s57 offen")
    a("s_mov_b32 s59, 0")
    a.label("L_poll_f")
    a(f"s_mul_i32 s54, s45, {23*2048}")
    a(f"s_add_u32 s54, s54, {WS_P3}")
    for ks in range(23):
        a(f"buffer_load_dwordx2 v[{16+2*ks}:{17+2*ks}], v9, s[12:15], s54 offen offset:{(ks&1)*2048} sc0 sc1")
        if ks & 1:
            a("s_add_u32 s54, s54, 4096")
    a("s_waitcnt vmcnt(0)")
    a("v_and_b32 v66, v16, v17")
    a("v_and_b32 v67, v18, v19")
    for r in range(20, 62, 2):
        a(f"v_and_b32 v66, v66, v{r}")
        a(f"v_and_b32 v67, v67, v{r+1}")
    a("v_and_b32 v66, v66, v67")
    a("v_and_b32 v66, 1, v66")
    a("v_cmp_eq_u32 vcc, 0, v66")
    a("s_cbranch_vccz L_poll_f_done")
    a("s_add_u32 s59, s59, 1")
    a(f"s_cmp_ge_u32 s59, {SPIN_MAX}")
    a("s_cbranch_scc1 L_poll_f_done")
    a("s_sleep 2")
    a("s_branch L_poll_f")
    a.label("L_poll_f_done")
    if stamps:
        a("s_cmp_lg_u32 s3, 0")
        a("s_cbranch_scc1 L_st10")
        stamp(10)
        a.label("L_st10")
    for ks in range(1, 16):
        a(f"v_add_f32 v16, v16, v{16+2*ks}")
        a(f"v_add_f32 v17, v17, v{17+2*ks}")
    for ks in range(17, 23):
        a(f"v_add_f32 v48, v48, v{16+2*ks}")
        a(f"v_add_f32 v49, v49, v{17+2*ks}")
    round_bf16_pair(a, 16, 17, 12)
    round_bf16_pair(a, 48, 49, 12)
    a("v_lshlrev_b32 v66, 16, v65")
    a("v_and_b32 v67, 0xffff0000, v65")
    a("v_add_f32 v48, v48, v66")
    a("v_add_f32 v49, v49, v67")
    round_bf16_pair(a, 48, 49, 12)
    for r in range(2):
        a(f"v_mul_f32 v12, {f32bits(-LOG2E):#x}, v{48+r}")
        a("v_exp_f32 v12, v12")
        a("s_nop 0")
        a("v_add_f32 v12, 1.0, v12")
        a("v_rcp_f32 v12, v12")
        a("s_nop 0")
        a(f"v_mul_f32 v{48+r}, v{48+r}, v12")
    round_bf16_pair(a, 48, 49, 12)
    a("v_mul_f32 v16, v16, v48")
    a("v_mul_f32 v17, v17, v49")
    round_bf16_pair(a, 16, 17, 12)
    a("v_lshlrev_b32 v66, 16, v64")
    a("v_and_b32 v67, 0xffff0000, v64")
    a("v_add_f32 v16, v16, v66")
    a("v_add_f32 v17, v17, v67")
    a("v_cvt_pk_bf16_f32 v12, v16, v17")
    a("buffer_store_dword v12, v10, s[28:31], s57 offen")
    a.label("L_end")
    a("s_endpgm")
    a.raw('.section .rodata,"a"')
    a.raw(".p2align 6")
    a.raw(f".amdhsa_kernel {name}")
    a.raw("  .amdhsa_next_free_vgpr 224")
    a.raw("  .amdhsa_next_free_sgpr 102")
    a.raw("  .amdhsa_accum_offset 224")
    a.raw("  .amdhsa_group_segment_fixed_size 0")
    a.raw("  .amdhsa_kernarg_size 104")
    a.raw("  .amdhsa_user_sgpr_count 2")
    a.raw("  .amdhsa_user_sgpr_kernarg_segment_ptr 1")
    a.raw("  .amdhsa_system_sgpr_workgroup_id_x 1")
    a.raw(".end_amdhsa_kernel")
    return a.text()

def main():
    ap = argparse.ArgumentParser()
    ap.add_argument("-o", default=f"cdna_kernels/{NAME}.s")
    ap.add_argument("--pol", default="nt")
    ap.add_argument("--stamps", action="store_true")
    ap.add_argument("--nstat", type=int, default=24)
    ap.add_argument("--psl0", type=int, default=64)
    ap.add_argument("--psl", type=int, default=12)
    ap.add_argument("--pace", type=int, default=1)
    args = ap.parse_args()
    open(args.o, "w").write(gen(args.pol, args.stamps, args.nstat, args.psl0, args.psl, args.pace))

main()
```

```python
import struct, sys, argparse

def f32bits(x):
    return struct.unpack("<I", struct.pack("<f", x))[0]

LOG2E = 1.4426950408889634
NAME = "recurrent_scan__gqa_block_cached__dense_activation_gelu__decode"
HEADER = open(f"cdna_kernels/{NAME}.s.ref").read().split("; Override launch")[0]

WS_Q = 0x0
WS_H = 0x10000
WS_CTR = 0x1F000
WS_PO = 0x20000
WS_ML = 0xA0000
WS_P3 = 0xB0000
WS_SIZE = 0x40000000
LDS_W = 131072
LDS_XN = 16384
LDS_WQ = 0
LDS_W1 = 131072
LDS_GO = 163832
LDS_ACT = 4096
SPIN_MAX = 1 << 17

class A:
    def __init__(self):
        self.l = []
    def __call__(self, s):
        self.l.append("    " + s)
    def label(self, s):
        self.l.append(s + ":")
    def raw(self, s):
        self.l.append(s)
    def text(self):
        return "\n".join(self.l) + "\n"

def srd(a, d, p, size):
    a(f"s_mov_b32 s{d}, s{p}")
    a(f"s_and_b32 s{d+1}, s{p+1}, 0xffff")
    a(f"s_mov_b32 s{d+2}, {size:#x}")
    a(f"s_mov_b32 s{d+3}, 0x00020000")

def xlane_reduce_g(a, op, v, t):
    a(f"v_mov_b32 v{t}, v{v}")
    a("s_nop 1")
    a(f"v_permlane16_swap_b32 v{v}, v{t}")
    a("s_nop 1")
    a(f"{op} v{v}, v{v}, v{t}")
    a(f"v_mov_b32 v{t}, v{v}")
    a("s_nop 1")
    a(f"v_permlane32_swap_b32 v{v}, v{t}")
    a("s_nop 1")
    a(f"{op} v{v}, v{v}, v{t}")

def reduce32_add(a, v, t):
    for pat in ("quad_perm:[1,0,3,2]", "quad_perm:[2,3,0,1]", "row_half_mirror", "row_mirror"):
        a("s_nop 1")
        a(f"v_add_f32_dpp v{v}, v{v}, v{v} {pat} row_mask:0xf bank_mask:0xf")
    a(f"v_mov_b32 v{t}, v{v}")
    a("s_nop 1")
    a(f"v_permlane16_swap_b32 v{v}, v{t}")
    a("s_nop 1")
    a(f"v_add_f32 v{v}, v{v}, v{t}")

def round_bf16_pair(a, v0, v1, t):
    a(f"v_cvt_pk_bf16_f32 v{t}, v{v0}, v{v1}")
    a(f"v_lshlrev_b32 v{v0}, 16, v{t}")
    a(f"v_and_b32 v{v1}, 0xffff0000, v{t}")

P_X, P_K, P_V, P_WQ, P_WO, P_W1, P_B1, P_W2, P_B2, P_OUT, P_DBG, P_WS = 64, 66, 68, 70, 72, 76, 78, 80, 82, 84, 86, 88

def gen(pol="nt", stamps=False, nstat=24, psl0=64, psl=12, pace=1, pmode=0, early=0):
    a = A()
    def stamp(idx):
        if not stamps:
            return
        a("s_memrealtime s[62:63]")
        a("s_waitcnt lgkmcnt(0)")
        a("v_mov_b32 v222, s62")
        a("v_mov_b32 v223, s63")
        a("s_lshl_b32 s62, s2, 7")
        a(f"s_add_u32 s62, s62, {0x200000 + idx*8}")
        a("v_mov_b32 v221, 0")
        a("s_mov_b64 s[90:91], exec")
        a("s_mov_b64 exec, 1")
        a("buffer_store_dwordx2 v[222:223], v221, s[12:15], s62 offen")
        a("s_mov_b64 exec, s[90:91]")

    a.raw(HEADER.rstrip("\n"))
    a.raw("; @launch grid=(256,1,1) block=(256,1,1) lds=163840")
    a.raw('.amdgcn_target "amdgcn-amd-amdhsa--gfx950"')
    name = NAME + "_kernel"
    a.raw(".text")
    a.raw(f".globl {name}")
    a.raw(".p2align 8")
    a.raw(f".type {name},@function")
    a.label(name)
    pol = (" " + pol) if pol else ""
    QF, ACC, KO, VO, KR, VR, KF, VF, S = 16, 48, 112, 120, 128, 132, 140, 172, 204
    M, L, PB = 208, 209, 220
    TS, WM = 32768, 0xfffff

    a("s_cmp_ge_u32 s2, 256")
    a("s_cbranch_scc1 L_end")
    a("s_load_dwordx16 s[64:79], s[0:1], 0")
    a("s_load_dwordx8 s[80:87], s[0:1], 64")
    a("s_load_dwordx2 s[88:89], s[0:1], 96")
    a("v_lshrrev_b32 v1, 6, v0")
    a("v_and_b32 v2, 63, v0")
    a("v_readfirstlane_b32 s3, v1")
    a("v_and_b32 v3, 15, v2")
    a("v_lshrrev_b32 v4, 4, v2")
    a("v_lshrrev_b32 v5, 5, v2")
    a("v_and_b32 v6, 31, v2")
    a("s_lshl_b32 s23, s2, 20")
    a("s_lshl_b32 s22, s3, 13")
    a("s_add_u32 s23, s23, s22")
    a("s_mov_b32 s22, 0")
    a("s_mov_b32 s27, 0x80000000")
    a("s_lshl_b32 s25, s3, 15")
    for k in range(8):
        a(f"s_add_u32 s{32+k}, s25, {k*4096}")
    a(f"s_mul_i32 s44, s2, {(1<<16)//7+1}")
    a("s_lshr_b32 s44, s44, 16")
    a("s_mul_i32 s45, s44, 7")
    a("s_sub_u32 s45, s2, s45")
    a("s_and_b32 s46, s2, 7")
    a("s_lshr_b32 s47, s2, 3")
    a("v_lshlrev_b32 v8, 9, v5")
    for n in range(8):
        add = 4096 if n >= 4 else 0
        a(f"v_or_b32 v9, {2*n}, v5")
        a("v_xor_b32 v9, v9, v6")
        a(f"v_lshl_add_u32 v{KO+n}, v9, 4, v8")
        if add:
            a(f"v_add_u32 v{KO+n}, {add}, v{KO+n}")
        a(f"v_or_b32 v9, {(2*n)&7}, v5")
        a("v_lshlrev_b32 v9, 1, v9")
        a("v_xor_b32 v9, v9, v6")
        a(f"v_lshl_add_u32 v{VO+n}, v9, 4, v8")
        if add:
            a(f"v_add_u32 v{VO+n}, {add}, v{VO+n}")
    a("v_lshl_add_u32 v7, v1, 1, v5")
    a("v_mul_u32_u24 v7, 896, v7")
    a("v_lshl_add_u32 v7, v6, 2, v7")
    a("s_waitcnt lgkmcnt(0)")
    srd(a, 4, P_K, 0x10000000)
    srd(a, 8, P_V, 0x10000000)
    srd(a, 12, P_WS, WS_SIZE)
    srd(a, 16, P_X, 7168)
    srd(a, 48, P_DBG, 256)

    def issue(kind, slot, soff):
        srdr = "s[4:7]" if kind == "K" else "s[8:11]"
        vo = KO if kind == "K" else VO
        sl = slot + (0 if kind == "K" else 2)
        for half in range(2):
            a(f"s_mov_b32 m0, s{32 + 2*sl + half}")
            a("s_nop 0")
            for q in range(4):
                n = 4*half + q
                off = f" offset:{1024*q}" if q else ""
                a(f"buffer_load_dwordx4 v{vo+n}, {srdr}, {soff} offen{off}{pol} lds")

    def ring_offsets():
        a("s_add_u32 s26, s23, s22")
        a(f"s_add_u32 s22, s22, {TS}")
        a("s_add_u32 s28, s23, s22")
        a(f"s_add_u32 s22, s22, {TS}")

    def go_read():
        a("ds_read_b32 v15, v14")
        a("s_waitcnt lgkmcnt(0)")
        a("v_readfirstlane_b32 s62, v15")

    def ring_paced(tag, mid=None, pre=False):
        a(f"v_mov_b32 v14, {LDS_GO}")
        a("s_mov_b32 s62, 0")
        if not pre:
            ring_offsets()
            issue("K", 0, "s26")
        if mid: mid()
        for k, (kind, slot, so_) in enumerate((("V", 0, "s26"), ("K", 1, "s28"), ("V", 1, "s28"))):
            a("s_cmp_lg_u32 s62, 0")
            a(f"s_cbranch_scc1 L_rp{tag}{k}")
            a("s_waitcnt vmcnt(0)")
            go_read()
            a.label(f"L_rp{tag}{k}")
            issue(kind, slot, so_)

    def wait_go(tag):
        a("s_mov_b32 s63, 0")
        a.label(f"L_wg{tag}")
        a("s_cmp_lg_u32 s62, 0")
        a(f"s_cbranch_scc1 L_wgd{tag}")
        a("s_add_u32 s63, s63, 1")
        a(f"s_cmp_ge_u32 s63, {SPIN_MAX*16}")
        a(f"s_cbranch_scc1 L_wgd{tag}")
        a("s_sleep 1")
        go_read()
        a(f"s_branch L_wg{tag}")
        a.label(f"L_wgd{tag}")

    XD, XF = 72, 80
    def x_loads():
        for k in range(7):
            a(f"buffer_load_dword v{XD+k}, v7, s[16:19], 0 offen offset:{128*k}")

    def layernorm():
        for k in range(7):
            a(f"v_lshlrev_b32 v{XF+2*k}, 16, v{XD+k}")
            a(f"v_and_b32 v{XF+2*k+1}, 0xffff0000, v{XD+k}")
        a(f"v_add_f32 v94, v{XF}, v{XF+1}")
        a(f"v_add_f32 v95, v{XF+2}, v{XF+3}")
        for k in range(4, 14, 2):
            a(f"v_add_f32 v94, v94, v{XF+k}")
            a(f"v_add_f32 v95, v95, v{XF+k+1}")
        a("v_add_f32 v94, v94, v95")
        reduce32_add(a, 94, 95)
        a(f"v_mul_f32 v94, {f32bits(1.0/448):#x}, v94")
        a(f"v_sub_f32 v96, v{XF}, v94")
        a("v_mul_f32 v97, v96, v96")
        a(f"v_sub_f32 v96, v{XF+1}, v94")
        a("v_mul_f32 v98, v96, v96")
        for k in range(2, 14):
            a(f"v_sub_f32 v96, v{XF+k}, v94")
            a(f"v_fmac_f32 v{97+(k&1)}, v96, v96")
        a("v_add_f32 v97, v97, v98")
        reduce32_add(a, 97, 95)
        a(f"v_mul_f32 v97, {f32bits(1.0/448):#x}, v97")
        round_bf16_pair(a, 94, 97, 95)
        a(f"v_add_f32 v97, {f32bits(1e-5):#x}, v97")
        round_bf16_pair(a, 97, 96, 95)
        a("v_sqrt_f32 v97, v97")
        a("s_nop 0")
        round_bf16_pair(a, 97, 96, 95)
        a("v_rcp_f32 v98, v97")
        a("s_nop 0")
        for k in range(7):
            f0, f1 = XF+2*k, XF+2*k+1
            a(f"v_sub_f32 v{f0}, v{f0}, v94")
            a(f"v_sub_f32 v{f1}, v{f1}, v94")
            round_bf16_pair(a, f0, f1, 95)
            a(f"v_mul_f32 v96, v{f0}, v98")
            a(f"v_mul_f32 v99, v{f1}, v98")
            a(f"v_fma_f32 v{f0}, -v96, v97, v{f0}")
            a(f"v_fma_f32 v{f1}, -v99, v97, v{f1}")
            a(f"v_fmac_f32 v96, v{f0}, v98")
            a(f"v_fmac_f32 v99, v{f1}, v98")
            a(f"v_cvt_pk_bf16_f32 v{XD+k}, v96, v99")
        for k in range(7):
            a(f"ds_write_b32 v7, v{XD+k} offset:{LDS_XN+128*k}")
        a("s_waitcnt lgkmcnt(0)")

    def proj_dma(is_h):
        stride = 3584 if is_h else 8192
        ldsbase = LDS_W1 if is_h else LDS_WQ
        srd(a, 92, P_W1 if is_h else P_WQ, 448*stride)
        if is_h:
            a("s_mul_i32 s54, s46, 14")
        else:
            a("s_lshl_b32 s54, s46, 5")
        a("s_add_u32 s54, s54, s47")
        a("s_lshl_b32 s55, s54, 5")
        a("v_lshrrev_b32 v10, 1, v2")
        a(f"v_mul_u32_u24 v10, {stride}, v10")
        a("v_and_b32 v11, 1, v2")
        a("v_lshl_add_u32 v10, v11, 4, v10")
        a("s_mov_b32 s56, s55")
        for n in range(14):
            a(f"s_mov_b32 m0, {ldsbase + n*1024}")
            a("s_nop 0")
            a("buffer_load_dwordx4 v10, s[92:95], s56 offen lds")
            if n < 13:
                a(f"s_add_u32 s56, s56, {32*stride}")
        if is_h:
            srd(a, 28, P_B1, 3584)
            a("v_lshlrev_b32 v11, 1, v3")
            a("buffer_load_ushort v104, v11, s[28:31], s55 offen")

    XA, B, D = 140, 48, 196
    def proj_areads():
        a("v_and_b32 v10, 7, v3")
        a("v_mul_u32_u24 v10, 896, v10")
        a("v_lshl_add_u32 v10, v4, 4, v10")
        for s in range(14):
            a(f"ds_read_b128 v[{XA+4*s}:{XA+4*s+3}], v10 offset:{LDS_XN+64*s}")
        a("s_waitcnt lgkmcnt(0)")

    def h_store_addr():
        a("v_lshrrev_b32 v105, 2, v2")
        a("v_mul_u32_u24 v105, 7168, v105")
        a("v_and_b32 v106, 3, v2")
        a("v_lshl_add_u32 v105, v106, 4, v105")
        a("s_mul_i32 s57, s46, 14")
        a("s_add_u32 s57, s57, s47")
        a("s_lshl_b32 s57, s57, 6")
        a(f"s_add_u32 s57, s57, {WS_H}")

    def proj_gemm(is_h):
        ldsbase = LDS_W1 if is_h else LDS_WQ
        T = (16384 if is_h else 24576)
        lb = 0
        a("v_lshrrev_b32 v11, 2, v3")
        a("v_lshl_add_u32 v11, v4, 3, v11")
        a("v_lshlrev_b32 v11, 5, v11")
        a("v_and_b32 v12, 3, v3")
        a("v_lshl_add_u32 v11, v12, 3, v11")
        if is_h:
            a(f"v_add_u32 v11, {ldsbase}, v11")
        a(f"s_waitcnt vmcnt({8 if is_h else 0})")
        if not is_h:
            stamp(3)
        for s in range(14):
            a(f"ds_read_b64_tr_b16 v[{B+4*s}:{B+4*s+1}], v11 offset:{lb+1024*s}")
            a(f"ds_read_b64_tr_b16 v[{B+4*s+2}:{B+4*s+3}], v11 offset:{lb+1024*s+128}")
        a("s_waitcnt lgkmcnt(0)")
        for s in range(14):
            c = "0" if s == 0 else f"v[{D}:{D+3}]"
            a(f"v_mfma_f32_16x16x32_bf16 v[{D}:{D+3}], v[{XA+4*s}:{XA+4*s+3}], v[{B+4*s}:{B+4*s+3}], {c}")
        if is_h:
            a("v_lshlrev_b32 v10, 8, v4")
            a("v_lshl_add_u32 v10, v3, 2, v10")
            a(f"v_add_u32 v10, {ldsbase}, v10")
        else:
            a("v_lshlrev_b32 v10, 7, v4")
            a("v_lshl_add_u32 v10, v3, 1, v10")
        a("v_lshlrev_b32 v13, 4, v2")
        if is_h:
            a(f"v_add_u32 v13, {ldsbase}, v13")
        a("s_nop 7")
        if is_h:
            a("v_lshlrev_b32 v104, 16, v104")
            for p in range(2):
                round_bf16_pair(a, D+2*p, D+2*p+1, 11)
            for r in range(4):
                a(f"v_add_f32 v{D+r}, v{D+r}, v104")
            for p in range(2):
                round_bf16_pair(a, D+2*p, D+2*p+1, 11)
            kk = -2.0 * LOG2E * 0.7978845608028654
            for r in range(4):
                x = D + r
                a(f"v_mul_f32 v12, v{x}, v{x}")
                a(f"v_mul_f32 v12, {f32bits(0.044715):#x}, v12")
                a(f"v_fma_f32 v12, v12, v{x}, v{x}")
                a(f"v_mul_f32 v12, {f32bits(kk):#x}, v12")
                a("v_exp_f32 v12, v12")
                a("s_nop 0")
                a("v_add_f32 v12, 1.0, v12")
                a("v_rcp_f32 v12, v12")
                a("s_nop 0")
                a(f"v_mul_f32 v{x}, v{x}, v12")
            for p in range(2):
                round_bf16_pair(a, D+2*p, D+2*p+1, 11)
            for r in range(4):
                a(f"v_or_b32 v{D+r}, 1, v{D+r}")
            a("v_cmp_gt_u32 vcc, 32, v2")
            a("s_and_saveexec_b64 s[60:61], vcc")
            for r in range(4):
                a(f"ds_write_b32 v10, v{D+r} offset:{T+64*r}")
            a("s_waitcnt lgkmcnt(0)")
            a(f"ds_read_b128 v[{D}:{D+3}], v13 offset:{T}")
            a("s_waitcnt lgkmcnt(0)")
            a(f"buffer_store_dwordx4 v[{D}:{D+3}], v105, s[12:15], s57 offen sc0 sc1")
            a("s_mov_b64 exec, s[60:61]")
        else:
            a(f"v_cvt_pk_bf16_f32 v12, v{D}, v{D+1}")
            a(f"v_cvt_pk_bf16_f32 v14, v{D+2}, v{D+3}")
            a("v_cmp_gt_u32 vcc, 32, v2")
            a("s_and_saveexec_b64 s[60:61], vcc")
            a(f"ds_write_b16 v10, v12 offset:{T}")
            a(f"ds_write_b16_d16_hi v10, v12 offset:{T+32}")
            a(f"ds_write_b16 v10, v14 offset:{T+64}")
            a(f"ds_write_b16_d16_hi v10, v14 offset:{T+96}")
            a("s_mov_b64 exec, s[60:61]")
            a("v_lshrrev_b32 v11, 1, v2")
            a("v_lshlrev_b32 v11, 13, v11")
            a("v_and_b32 v12, 1, v2")
            a("v_lshl_add_u32 v11, v12, 4, v11")
            a("v_cmp_gt_u32 vcc, 16, v2")
            a("s_and_saveexec_b64 s[60:61], vcc")
            a("s_waitcnt lgkmcnt(0)")
            a(f"ds_read_b128 v[{D}:{D+3}], v13 offset:{T}")
            a("s_waitcnt lgkmcnt(0)")
            a(f"buffer_store_dwordx4 v[{D}:{D+3}], v11, s[12:15], s55 offen sc0 sc1")
            a("s_mov_b64 exec, s[60:61]")
            if stamps:
                a("s_memrealtime s[90:91]")
                a("s_waitcnt lgkmcnt(0)")
                a("v_mov_b32 v218, s90")
                a("v_mov_b32 v219, s91")
            a("s_waitcnt vmcnt(0)")
            if stamps:
                a("s_lshl_b32 s62, s2, 7")
                a(f"s_add_u32 s62, s62, {0x200000 + 11*8}")
                a("v_mov_b32 v221, 0")
                a("s_mov_b64 exec, 1")
                a("buffer_store_dwordx2 v[218:219], v221, s[12:15], s62 offen")
                a("s_mov_b64 exec, -1")

    a("s_cmp_eq_u32 s3, 0")
    a("s_cbranch_scc1 L_w0")
    a("s_cmp_eq_u32 s3, 1")
    a("s_cbranch_scc1 L_w1")
    a("s_cmp_eq_u32 s3, 2")
    a("s_cbranch_scc1 L_w2")
    def role_dma(tag):
        a("s_cmp_ge_u32 s2, 161")
        a(f"s_cbranch_scc1 L_rd_done{tag}")
        a("v_lshrrev_b32 v10, 3, v2")
        a("v_mul_u32_u24 v10, 896, v10")
        a("v_and_b32 v11, 7, v2")
        a("v_lshl_add_u32 v10, v11, 4, v10")
        a("s_lshl_b32 s54, s45, 7")
        a("s_cmp_ge_u32 s44, 16")
        a(f"s_cbranch_scc1 L_rd_ffn{tag}")
        srd(a, 92, P_WO, 4096*896)
        a(f"s_mul_i32 s55, s44, {256*896}")
        a("s_add_u32 s54, s54, s55")
        for n in range(32):
            a(f"s_mov_b32 m0, {LDS_W + n*1024}")
            a("s_nop 0")
            a("buffer_load_dwordx4 v10, s[92:95], s54 offen lds")
            if n < 31:
                a(f"s_add_u32 s54, s54, {8*896}")
        a(f"s_branch L_rd_done{tag}")
        a.label(f"L_rd_ffn{tag}")
        srd(a, 92, P_W2, 1792*896)
        a("s_sub_u32 s55, s44, 16")
        a(f"s_mul_i32 s55, s55, {256*896}")
        a("s_add_u32 s54, s54, s55")
        for n in range(32):
            a(f"s_mov_b32 m0, {LDS_W + n*1024}")
            a("s_nop 0")
            a("buffer_load_dwordx4 v10, s[92:95], s54 offen lds")
            if n < 31:
                a(f"s_add_u32 s54, s54, {8*896}")
        a.label(f"L_rd_done{tag}")

    def q_loads():
        a("s_lshr_b32 s24, s2, 2")
        a("s_lshl_b32 s24, s24, 10")
        a("v_and_b32 v7, 1, v3")
        a("v_lshlrev_b32 v7, 9, v7")
        a("v_lshl_add_u32 v7, v4, 4, v7")
        for s in range(8):
            a(f"buffer_load_dwordx4 v[{QF+4*s}:{QF+4*s+3}], v7, s[12:15], s24 offen offset:{64*s} sc0 sc1")

    def zero16():
        for r in range(16, 20):
            a(f"v_mov_b32 v{r}, 0")

    zero16()
    a("v_lshlrev_b32 v10, 4, v2")
    a("s_cmp_ge_u32 s2, 161")
    a("s_cbranch_scc1 L_w3_noclr")
    a("s_mul_i32 s54, s45, 23")
    a("s_add_u32 s54, s54, s44")
    a("s_lshl_b32 s54, s54, 11")
    a(f"s_add_u32 s54, s54, {WS_P3}")
    a("buffer_store_dwordx4 v[16:19], v10, s[12:15], s54 offen sc0 sc1")
    a("buffer_store_dwordx4 v[16:19], v10, s[12:15], s54 offen offset:1024 sc0 sc1")
    a.label("L_w3_noclr")
    x_loads()
    if early:
        ring_offsets()
        issue("K", 0, "s26")
        a("s_waitcnt vmcnt(8)")
    else:
        a("s_waitcnt vmcnt(0)")
    layernorm()
    a("s_barrier")
    ring_paced("w3", lambda: a("s_barrier"), pre=early)
    wait_go("w3")
    q_loads()
    a("s_barrier")
    a("s_branch L_join")
    a.label("L_w2")
    zero16()
    a("v_lshlrev_b32 v10, 4, v2")
    a("s_lshl_b32 s54, s2, 11")
    a(f"s_add_u32 s54, s54, {WS_PO}")
    a("buffer_store_dwordx4 v[16:19], v10, s[12:15], s54 offen sc0 sc1")
    a("buffer_store_dwordx4 v[16:19], v10, s[12:15], s54 offen offset:1024 sc0 sc1")
    a("s_lshl_b32 s54, s2, 4")
    a(f"s_add_u32 s54, s54, {WS_ML}")
    a("v_cmp_eq_u32 vcc, 0, v2")
    a("s_and_saveexec_b64 s[60:61], vcc")
    a("buffer_store_dwordx4 v[16:19], v10, s[12:15], s54 offen sc0 sc1")
    a("s_and_b32 s54, s2, 3")
    a("s_cmp_lg_u32 s54, 0")
    a("s_cbranch_scc1 L_w2_noctr")
    a("s_lshl_b32 s54, s2, 4")
    a(f"s_add_u32 s54, s54, {WS_CTR}")
    a("buffer_store_dwordx4 v[16:19], v10, s[12:15], s54 offen sc0 sc1")
    a.label("L_w2_noctr")
    a("s_mov_b64 exec, s[60:61]")
    x_loads()
    a(f"v_mov_b32 v14, {LDS_GO}")
    a("ds_write_b32 v14, v16")
    if early:
        ring_offsets()
        issue("K", 0, "s26")
        a("s_waitcnt vmcnt(8)")
    else:
        a("s_waitcnt vmcnt(0)")
    layernorm()
    a("s_barrier")
    if not early:
        ring_offsets()
        issue("K", 0, "s26")
    a("s_barrier")
    a("v_and_b32 v10, 7, v2")
    a("v_lshlrev_b32 v10, 4, v10")
    a("s_mov_b32 s54, 0")
    a(f"s_sleep {psl0}")
    a.label("L_poll_q")
    a("buffer_load_dword v11, v10, s[48:51], 0 offen offset:128 sc0 sc1")
    a("s_waitcnt vmcnt(0)")
    a("v_cmp_ne_u32 vcc, 32, v11")
    a("s_cbranch_vccz L_poll_q_done")
    a("s_add_u32 s54, s54, 1")
    a(f"s_cmp_ge_u32 s54, {SPIN_MAX}")
    a("s_cbranch_scc1 L_poll_q_done")
    a(f"s_sleep {psl}")
    a("s_branch L_poll_q")
    a.label("L_poll_q_done")
    a("v_mov_b32 v15, 1")
    a("ds_write_b32 v14, v15")
    q_loads()
    issue("V", 0, "s26")
    issue("K", 1, "s28")
    issue("V", 1, "s28")
    a("s_barrier")
    a("s_branch L_join")
    a.label("L_w1")
    a("s_cmp_ge_u32 s47, 14")
    a("s_cbranch_scc1 L_w1_noh")
    h_store_addr()
    zero16()
    a("v_cmp_gt_u32 vcc, 32, v2")
    a("s_and_saveexec_b64 s[60:61], vcc")
    a("buffer_store_dwordx4 v[16:19], v105, s[12:15], s57 offen sc0 sc1")
    a("s_mov_b64 exec, s[60:61]")
    x_loads()
    if early:
        ring_offsets()
        issue("K", 0, "s26")
        a("s_waitcnt vmcnt(8)")
    else:
        a("s_waitcnt vmcnt(0)")
    layernorm()
    a("s_barrier")
    proj_areads()
    a("s_barrier")
    ring_paced("w1a", pre=early)
    proj_dma(True)
    wait_go("w1a")
    q_loads()
    a("s_barrier")
    proj_gemm(True)
    a("s_waitcnt vmcnt(1)")
    role_dma("a")
    a("s_branch L_join2")
    a.label("L_w1_noh")
    x_loads()
    if early:
        ring_offsets()
        issue("K", 0, "s26")
        a("s_waitcnt vmcnt(8)")
    else:
        a("s_waitcnt vmcnt(0)")
    layernorm()
    a("s_barrier")
    a("s_barrier")
    ring_paced("w1b", pre=early)
    wait_go("w1b")
    q_loads()
    a("s_barrier")
    a("s_waitcnt vmcnt(0)")
    role_dma("b")
    a("s_branch L_join2")
    a.label("L_w0")
    stamp(0)
    x_loads()
    proj_dma(False)
    a("s_waitcnt vmcnt(14)")
    layernorm()
    a("s_barrier")
    stamp(1)
    proj_areads()
    a("s_barrier")
    proj_gemm(False)
    a("s_lshl_b32 s54, s46, 4")
    a("v_mov_b32 v10, s54")
    a("v_mov_b32 v11, 1")
    a("v_cmp_eq_u32 vcc, 0, v2")
    a("s_and_saveexec_b64 s[60:61], vcc")
    a("buffer_atomic_add v11, v10, s[48:51], 0 offen sc0")
    a("s_waitcnt vmcnt(0)")
    a("v_cmp_eq_u32 vcc, 31, v11")
    a("s_and_b64 exec, exec, vcc")
    a("s_cbranch_execz L_notlast")
    a("v_mov_b32 v11, 32")
    a("buffer_store_dword v11, v10, s[48:51], 0 offen offset:128 sc0 sc1")
    a.label("L_notlast")
    a("s_mov_b64 exec, s[60:61]")
    stamp(2)
    ring_paced("w0")
    wait_go("w0")
    stamp(4)
    q_loads()
    a("s_barrier")
    a.label("L_join")
    a("s_waitcnt vmcnt(0)")
    a.label("L_join2")
    a("v_xor_b32 v9, v4, v3")
    a("v_and_b32 v9, 3, v9")
    a("v_and_b32 v10, 12, v3")
    a("v_lshlrev_b32 v11, 9, v3")
    a("v_add_u32 v11, s25, v11")
    for q in range(4):
        a(f"v_xor_b32 v12, {4*q}, v10")
        a("v_add_u32 v12, v12, v9")
        a(f"v_lshl_add_u32 v{KR+q}, v12, 4, v11")
    a("v_lshrrev_b32 v9, 2, v3")
    a("v_lshl_add_u32 v9, v4, 2, v9")
    a("v_lshlrev_b32 v11, 9, v9")
    a("v_add_u32 v11, s25, v11")
    a("v_add_u32 v11, 16384, v11")
    a("v_and_b32 v10, 1, v3")
    a("v_lshl_add_u32 v11, v10, 3, v11")
    a("v_bfe_u32 v10, v3, 1, 1")
    a("v_lshl_add_u32 v11, v10, 4, v11")
    a("v_and_b32 v9, 7, v9")
    for nn in range(8):
        a(f"v_xor_b32 v12, {nn}, v9")
        a(f"v_lshl_add_u32 v{VR+nn}, v12, 5, v11")
    for k in range(64):
        a(f"v_mov_b32 v{ACC+k}, 0")
    a(f"v_mov_b32 v{M}, 0xf149f2ca")
    a(f"v_mov_b32 v{L}, 0")
    a(f"s_mov_b32 s30, {f32bits(LOG2E/16):#x}")
    a("s_mov_b32 s24, 0")
    if stamps:
        a("s_cmp_lg_u32 s3, 0")
        a("s_cbranch_scc1 L_st5")
        stamp(5)
        a.label("L_st5")
    a("s_lshr_b32 s31, s2, 2")
    a("s_lshl_b32 s99, s31, 6")
    a(f"s_add_u32 s99, s99, {WS_CTR}")
    a(f"s_add_u32 s96, s{P_WS}, s99")
    a(f"s_addc_u32 s97, s{P_WS+1}, 0")
    a("s_lshl_b32 s31, s31, 22")
    a("s_mov_b32 s99, 1")
    a("s_mov_b32 s100, 1")
    a("s_mov_b32 s98, 0")
    a.label("L_loop")
    for slot in range(2):
        so = slot * 8192
        a(f"s_cmp_eq_u32 s{99+slot}, 0")
        a("s_cbranch_scc1 L_loop_done")
        a("s_waitcnt vmcnt(24)")
        for s in range(8):
            a(f"ds_read_b128 v[{KF+4*s}:{KF+4*s+3}], v{KR+(s&3)} offset:{so + (s>>2)*256}")
        for s in range(8):
            a(f"s_waitcnt lgkmcnt({7-s})")
            c = "0" if s == 0 else f"v[{S}:{S+3}]"
            a(f"v_mfma_f32_16x16x32_bf16 v[{S}:{S+3}], v[{KF+4*s}:{KF+4*s+3}], v[{QF+4*s}:{QF+4*s+3}], {c}")
        a(f"s_cmp_lt_u32 s24, {nstat-2}")
        a(f"s_cbranch_scc0 L_dyn{slot}")
        a("s_add_u32 s29, s23, s22")
        a(f"s_add_u32 s22, s22, {TS}")
        a(f"s_branch L_dynd{slot}")
        a.label(f"L_dyn{slot}")
        if pmode == 0:
            a(f"s_lshr_b32 s26, s98, {((32-nstat)*4).bit_length()-1}")
            a("s_lshl_b32 s26, s26, 7")
            a(f"s_and_b32 s28, s98, {(32-nstat)*4-1}")
        else:
            a("s_and_b32 s26, s98, 3")
            a("s_lshl_b32 s26, s26, 7")
            a("s_lshr_b32 s28, s98, 2")
        a("s_add_u32 s26, s26, s28")
        a(f"s_add_u32 s26, s26, {nstat*4}")
        a("s_lshl_b32 s26, s26, 13")
        a("s_add_u32 s26, s26, s31")
        a(f"s_cmp_lt_u32 s98, {(32-nstat)*16}")
        a("s_cselect_b32 s29, s26, s27")
        a(f"s_cselect_b32 s{99+slot}, 1, 0")
        a.label(f"L_dynd{slot}")
        issue("K", slot, "s29")
        round_bf16_pair(a, S, S+1, 210)
        round_bf16_pair(a, S+2, S+3, 211)
        a(f"v_max3_f32 v212, v{S}, v{S+1}, v{S+2}")
        a(f"v_max_f32 v212, v212, v{S+3}")
        xlane_reduce_g(a, "v_max_f32", 212, 213)
        a(f"v_max_f32 v212, v212, v{M}")
        a(f"v_sub_f32 v213, v{M}, v212")
        a(f"v_mov_b32 v{M}, v212")
        a("v_mul_f32 v213, s30, v213")
        for r in range(4):
            a(f"v_sub_f32 v{S+r}, v{S+r}, v212")
        a("v_exp_f32 v213, v213")
        for r in range(4):
            a(f"v_mul_f32 v{S+r}, s30, v{S+r}")
        for r in range(4):
            a(f"v_exp_f32 v{S+r}, v{S+r}")
        a("s_nop 0")
        a(f"v_add_f32 v214, v{S}, v{S+1}")
        a(f"v_add_f32 v215, v{S+2}, v{S+3}")
        a(f"v_cvt_pk_bf16_f32 v{PB}, v{S}, v{S+1}")
        a(f"v_cvt_pk_bf16_f32 v{PB+1}, v{S+2}, v{S+3}")
        a("v_add_f32 v214, v214, v215")
        a(f"v_fma_f32 v{L}, v{L}, v213, v214")
        for k in range(64):
            a(f"v_mul_f32 v{ACC+k}, v213, v{ACC+k}")
        a("s_waitcnt vmcnt(24)")
        for n in range(16):
            a(f"ds_read_b64_tr_b16 v[{VF+2*n}:{VF+2*n+1}], v{VR+(n&7)} offset:{so + (n>>3)*256}")
        for n in range(16):
            a(f"s_waitcnt lgkmcnt({15-n})")
            a(f"v_mfma_f32_16x16x16_bf16 v[{ACC+4*n}:{ACC+4*n+3}], v[{VF+2*n}:{VF+2*n+1}], v[{PB}:{PB+1}], v[{ACC+4*n}:{ACC+4*n+3}]")
        issue("V", slot, "s29")
        a("s_add_u32 s24, s24, 1")
        a(f"s_cmp_lt_u32 s24, {nstat-2}")
        a(f"s_cbranch_scc1 L_nocl{slot}")
        a("s_mov_b32 s98, 1")
        a("s_atomic_add s98, s[96:97], 0x0 glc")
        a.label(f"L_nocl{slot}")
    a("s_branch L_loop")
    a.label("L_loop_done")
    a("s_waitcnt lgkmcnt(0)")
    if stamps:
        a("s_cmp_lg_u32 s3, 0")
        a("s_cbranch_scc1 L_st6")
        stamp(6)
        a.label("L_st6")
    xlane_reduce_g(a, "v_add_f32", L, 213)
    a("s_waitcnt vmcnt(0)")
    a("v_lshlrev_b32 v9, 10, v3")
    a("v_lshl_add_u32 v9, v4, 4, v9")
    a("v_add_u32 v9, s25, v9")
    a("v_lshlrev_b32 v10, 3, v3")
    a("v_add_u32 v10, s25, v10")
    a("v_cmp_gt_u32 vcc, 2, v3")
    a("s_and_saveexec_b64 s[40:41], vcc")
    for n in range(16):
        a(f"ds_write_b128 v9, v[{ACC+4*n}:{ACC+4*n+3}] offset:{64*n}")
    a(f"ds_write_b64 v10, v[{M}:{L}] offset:2048")
    a("s_mov_b64 exec, s[40:41]")
    a("s_waitcnt lgkmcnt(0)")
    a("s_barrier")
    a("v_lshrrev_b32 v9, 7, v0")
    a("v_and_b32 v10, 127, v0")
    a("v_lshlrev_b32 v11, 3, v9")
    a("v_lshlrev_b32 v12, 10, v9")
    a("v_lshl_add_u32 v12, v10, 3, v12")
    a("v_add_u32 v13, 0x10000, v11")
    a("v_add_u32 v14, 0x10000, v12")
    for w in range(4):
        a(f"ds_read_b64 v[{20+2*w}:{21+2*w}], v{11 if w < 2 else 13} offset:{(w&1)*32768+2048}")
    for w in range(4):
        a(f"ds_read_b64 v[{30+2*w}:{31+2*w}], v{12 if w < 2 else 14} offset:{(w&1)*32768}")
    a("s_waitcnt lgkmcnt(0)")
    a("v_max3_f32 v40, v20, v22, v24")
    a("v_max_f32 v40, v40, v26")
    for w in range(4):
        a(f"v_sub_f32 v{20+2*w}, v{20+2*w}, v40")
        a(f"v_mul_f32 v{20+2*w}, s30, v{20+2*w}")
        a(f"v_exp_f32 v{20+2*w}, v{20+2*w}")
    a("s_nop 0")
    a("v_mul_f32 v41, v20, v21")
    a("v_mul_f32 v42, v20, v30")
    a("v_mul_f32 v43, v20, v31")
    for w in range(1, 4):
        a(f"v_fmac_f32 v41, v{20+2*w}, v{21+2*w}")
        a(f"v_fmac_f32 v42, v{20+2*w}, v{30+2*w}")
        a(f"v_fmac_f32 v43, v{20+2*w}, v{31+2*w}")
    for r in range(40, 44):
        a(f"v_or_b32 v{r}, 1, v{r}")
    a("s_lshl_b32 s24, s2, 11")
    a(f"s_add_u32 s24, s24, {WS_PO}")
    a("buffer_store_dwordx2 v[42:43], v12, s[12:15], s24 offen sc0 sc1")
    a("s_lshl_b32 s24, s2, 4")
    a(f"s_add_u32 s24, s24, {WS_ML}")
    a("v_cmp_eq_u32 vcc, 0, v10")
    a("s_and_saveexec_b64 s[40:41], vcc")
    a("buffer_store_dwordx2 v[40:41], v11, s[12:15], s24 offen sc0 sc1")
    a("s_mov_b64 exec, s[40:41]")
    if stamps:
        a("s_cmp_lg_u32 s3, 0")
        a("s_cbranch_scc1 L_st7")
        stamp(7)
        a.label("L_st7")
    a("v_lshrrev_b32 v7, 5, v0")
    a("v_and_b32 v8, 31, v0")
    a("s_cmp_ge_u32 s2, 168")
    a("s_cbranch_scc1 L_end")
    a("s_cmp_ge_u32 s2, 161")
    a("s_cbranch_scc1 L_final")
    a("s_cmp_ge_u32 s44, 16")
    a("s_cbranch_scc1 L_r_ffn")
    a("v_lshlrev_b32 v9, 16, v7")
    a("v_lshl_add_u32 v9, v8, 5, v9")
    a("s_lshr_b32 s54, s44, 1")
    a("s_lshl_b32 s54, s54, 13")
    a("s_and_b32 s55, s44, 1")
    a("s_lshl_b32 s56, s55, 10")
    a("s_add_u32 s54, s54, s56")
    a(f"s_add_u32 s54, s54, {WS_PO}")
    a("s_add_u32 s57, s54, 4096")
    a("v_lshlrev_b32 v10, 9, v7")
    a("s_lshr_b32 s58, s44, 1")
    a("s_lshl_b32 s58, s58, 6")
    a("s_lshl_b32 s56, s55, 3")
    a("s_add_u32 s58, s58, s56")
    a(f"s_add_u32 s58, s58, {WS_ML}")
    a("s_mov_b32 s59, 0")
    a.label("L_poll_p")
    for sp in range(4):
        so_ = "s54" if sp < 2 else "s57"
        a(f"buffer_load_dwordx4 v[{16+8*sp}:{19+8*sp}], v9, s[12:15], {so_} offen offset:{(sp&1)*2048} sc0 sc1")
        a(f"buffer_load_dwordx4 v[{20+8*sp}:{23+8*sp}], v9, s[12:15], {so_} offen offset:{(sp&1)*2048+16} sc0 sc1")
    for sp in range(4):
        a(f"buffer_load_dwordx2 v[{48+2*sp}:{49+2*sp}], v10, s[12:15], s58 offen offset:{sp*16} sc0 sc1")
    a("s_waitcnt vmcnt(0)")
    a("v_and_b32 v56, v16, v17")
    a("v_and_b32 v57, v18, v19")
    for r in range(20, 56, 2):
        a(f"v_and_b32 v56, v56, v{r}")
        a(f"v_and_b32 v57, v57, v{r+1}")
    a("v_and_b32 v56, v56, v57")
    a("v_and_b32 v56, 1, v56")
    a("v_cmp_eq_u32 vcc, 0, v56")
    a("s_cbranch_vccz L_poll_p_done")
    a("s_add_u32 s59, s59, 1")
    a(f"s_cmp_ge_u32 s59, {SPIN_MAX}")
    a("s_cbranch_scc1 L_poll_p_done")
    a("s_sleep 2")
    a("s_branch L_poll_p")
    a.label("L_poll_p_done")
    a("v_max3_f32 v56, v48, v50, v52")
    a("v_max_f32 v56, v56, v54")
    for sp in range(4):
        a(f"v_sub_f32 v{48+2*sp}, v{48+2*sp}, v56")
        a(f"v_mul_f32 v{48+2*sp}, s30, v{48+2*sp}")
        a(f"v_exp_f32 v{48+2*sp}, v{48+2*sp}")
    a("s_nop 0")
    a("v_mul_f32 v57, v48, v49")
    for sp in range(1, 4):
        a(f"v_fmac_f32 v57, v{48+2*sp}, v{49+2*sp}")
    a("v_rcp_f32 v57, v57")
    a("s_nop 0")
    for sp in range(4):
        a(f"v_mul_f32 v{48+2*sp}, v{48+2*sp}, v57")
    for e in range(8):
        a(f"v_mul_f32 v{16+e}, v48, v{16+e}")
        for sp in range(1, 4):
            a(f"v_fmac_f32 v{16+e}, v{48+2*sp}, v{16+8*sp+e}")
    for p in range(4):
        a(f"v_cvt_pk_bf16_f32 v{60+p}, v{16+2*p}, v{17+2*p}")
    a("s_branch L_r_act")
    a.label("L_r_ffn")
    a("v_mul_u32_u24 v9, 7168, v7")
    a("v_lshl_add_u32 v9, v8, 5, v9")
    a("s_sub_u32 s54, s44, 16")
    a("s_lshl_b32 s54, s54, 10")
    a(f"s_add_u32 s54, s54, {WS_H}")
    a("s_mov_b32 s59, 0")
    a.label("L_poll_h")
    a("buffer_load_dwordx4 v[16:19], v9, s[12:15], s54 offen sc0 sc1")
    a("buffer_load_dwordx4 v[20:23], v9, s[12:15], s54 offen offset:16 sc0 sc1")
    a("s_waitcnt vmcnt(0)")
    a("v_and_b32 v56, v16, v17")
    a("v_and_b32 v57, v18, v19")
    a("v_and_b32 v56, v56, v20")
    a("v_and_b32 v57, v57, v21")
    a("v_and_b32 v56, v56, v22")
    a("v_and_b32 v57, v57, v23")
    a("v_and_b32 v56, v56, v57")
    a("v_and_b32 v56, 1, v56")
    a("v_cmp_eq_u32 vcc, 0, v56")
    a("s_cbranch_vccz L_poll_h_done")
    a("s_add_u32 s59, s59, 1")
    a(f"s_cmp_ge_u32 s59, {SPIN_MAX}")
    a("s_cbranch_scc1 L_poll_h_done")
    a("s_sleep 2")
    a("s_branch L_poll_h")
    a.label("L_poll_h_done")
    for p in range(4):
        a(f"v_cvt_pk_bf16_f32 v{60+p}, v{16+2*p}, v{17+2*p}")
    a.label("L_r_act")
    if stamps:
        a("s_cmp_lg_u32 s3, 0")
        a("s_cbranch_scc1 L_st8")
        stamp(8)
        a.label("L_st8")
    a("v_lshlrev_b32 v9, 9, v7")
    a("v_lshl_add_u32 v9, v8, 4, v9")
    a(f"ds_write_b128 v9, v[60:63] offset:{LDS_ACT}")
    a("s_waitcnt lgkmcnt(0)")
    a("s_barrier")
    a("v_and_b32 v9, 7, v3")
    a("v_lshlrev_b32 v9, 9, v9")
    a("v_lshl_add_u32 v9, v4, 4, v9")
    a("v_lshrrev_b32 v10, 2, v3")
    a("v_lshl_add_u32 v10, v4, 3, v10")
    a("v_lshlrev_b32 v10, 7, v10")
    a("v_and_b32 v11, 3, v3")
    a("v_lshl_add_u32 v10, v11, 3, v10")
    a("s_lshl_b32 s54, s3, 5")
    a(f"s_add_u32 s54, s54, {LDS_W}")
    a("v_add_u32 v10, s54, v10")
    for s in range(8):
        a(f"ds_read_b128 v[{64+4*s}:{67+4*s}], v9 offset:{LDS_ACT+64*s}")
        a(f"ds_read_b64_tr_b16 v[{96+4*s}:{97+4*s}], v10 offset:{4096*s}")
        a(f"ds_read_b64_tr_b16 v[{98+4*s}:{99+4*s}], v10 offset:{4096*s+512}")
    a("s_waitcnt lgkmcnt(0)")
    for s in range(8):
        c = "0" if s == 0 else "v[128:131]"
        a(f"v_mfma_f32_16x16x32_bf16 v[128:131], v[{64+4*s}:{67+4*s}], v[{96+4*s}:{99+4*s}], {c}")
    a("v_lshlrev_b32 v9, 10, v4")
    a("v_lshl_add_u32 v9, v3, 2, v9")
    a("s_mul_i32 s54, s45, 23")
    a("s_add_u32 s54, s54, s44")
    a("s_lshl_b32 s54, s54, 11")
    a("s_lshl_b32 s55, s3, 6")
    a("s_add_u32 s54, s54, s55")
    a(f"s_add_u32 s54, s54, {WS_P3}")
    a("s_nop 4")
    for r in range(4):
        a(f"v_or_b32 v{128+r}, 1, v{128+r}")
    a("v_cmp_gt_u32 vcc, 32, v2")
    a("s_and_saveexec_b64 s[40:41], vcc")
    for r in range(4):
        a(f"buffer_store_dword v{128+r}, v9, s[12:15], s54 offen offset:{256*r} sc0 sc1")
    a("s_mov_b64 exec, s[40:41]")
    if stamps:
        a("s_cmp_lg_u32 s3, 0")
        a("s_cbranch_scc1 L_st9")
        stamp(9)
        a.label("L_st9")
    a("s_endpgm")
    a.label("L_final")
    a("s_sub_u32 s45, s2, 161")
    srd(a, 20, P_B2, 896)
    srd(a, 28, P_OUT, 7168)
    a("v_lshlrev_b32 v9, 8, v7")
    a("v_lshl_add_u32 v9, v8, 3, v9")
    a("v_mul_u32_u24 v10, 896, v7")
    a("v_lshl_add_u32 v10, v8, 2, v10")
    a("s_lshl_b32 s57, s45, 7")
    a("v_lshlrev_b32 v11, 2, v8")
    a("buffer_load_dword v64, v10, s[16:19], s57 offen")
    a("buffer_load_dword v65, v11, s[20:23], s57 offen")
    a("s_mov_b32 s59, 0")
    a.label("L_poll_f")
    a(f"s_mul_i32 s54, s45, {23*2048}")
    a(f"s_add_u32 s54, s54, {WS_P3}")
    for ks in range(23):
        a(f"buffer_load_dwordx2 v[{16+2*ks}:{17+2*ks}], v9, s[12:15], s54 offen offset:{(ks&1)*2048} sc0 sc1")
        if ks & 1:
            a("s_add_u32 s54, s54, 4096")
    a("s_waitcnt vmcnt(0)")
    a("v_and_b32 v66, v16, v17")
    a("v_and_b32 v67, v18, v19")
    for r in range(20, 62, 2):
        a(f"v_and_b32 v66, v66, v{r}")
        a(f"v_and_b32 v67, v67, v{r+1}")
    a("v_and_b32 v66, v66, v67")
    a("v_and_b32 v66, 1, v66")
    a("v_cmp_eq_u32 vcc, 0, v66")
    a("s_cbranch_vccz L_poll_f_done")
    a("s_add_u32 s59, s59, 1")
    a(f"s_cmp_ge_u32 s59, {SPIN_MAX}")
    a("s_cbranch_scc1 L_poll_f_done")
    a("s_sleep 2")
    a("s_branch L_poll_f")
    a.label("L_poll_f_done")
    if stamps:
        a("s_cmp_lg_u32 s3, 0")
        a("s_cbranch_scc1 L_st10")
        stamp(10)
        a.label("L_st10")
    for ks in range(1, 16):
        a(f"v_add_f32 v16, v16, v{16+2*ks}")
        a(f"v_add_f32 v17, v17, v{17+2*ks}")
    for ks in range(17, 23):
        a(f"v_add_f32 v48, v48, v{16+2*ks}")
        a(f"v_add_f32 v49, v49, v{17+2*ks}")
    round_bf16_pair(a, 16, 17, 12)
    round_bf16_pair(a, 48, 49, 12)
    a("v_lshlrev_b32 v66, 16, v65")
    a("v_and_b32 v67, 0xffff0000, v65")
    a("v_add_f32 v48, v48, v66")
    a("v_add_f32 v49, v49, v67")
    round_bf16_pair(a, 48, 49, 12)
    for r in range(2):
        a(f"v_mul_f32 v12, {f32bits(-LOG2E):#x}, v{48+r}")
        a("v_exp_f32 v12, v12")
        a("s_nop 0")
        a("v_add_f32 v12, 1.0, v12")
        a("v_rcp_f32 v12, v12")
        a("s_nop 0")
        a(f"v_mul_f32 v{48+r}, v{48+r}, v12")
    round_bf16_pair(a, 48, 49, 12)
    a("v_mul_f32 v16, v16, v48")
    a("v_mul_f32 v17, v17, v49")
    round_bf16_pair(a, 16, 17, 12)
    a("v_lshlrev_b32 v66, 16, v64")
    a("v_and_b32 v67, 0xffff0000, v64")
    a("v_add_f32 v16, v16, v66")
    a("v_add_f32 v17, v17, v67")
    a("v_cvt_pk_bf16_f32 v12, v16, v17")
    a("buffer_store_dword v12, v10, s[28:31], s57 offen")
    a.label("L_end")
    a("s_endpgm")
    a.raw('.section .rodata,"a"')
    a.raw(".p2align 6")
    a.raw(f".amdhsa_kernel {name}")
    a.raw("  .amdhsa_next_free_vgpr 224")
    a.raw("  .amdhsa_next_free_sgpr 102")
    a.raw("  .amdhsa_accum_offset 224")
    a.raw("  .amdhsa_group_segment_fixed_size 0")
    a.raw("  .amdhsa_kernarg_size 104")
    a.raw("  .amdhsa_user_sgpr_count 2")
    a.raw("  .amdhsa_user_sgpr_kernarg_segment_ptr 1")
    a.raw("  .amdhsa_system_sgpr_workgroup_id_x 1")
    a.raw(".end_amdhsa_kernel")
    return a.text()

def main():
    ap = argparse.ArgumentParser()
    ap.add_argument("-o", default=f"cdna_kernels/{NAME}.s")
    ap.add_argument("--pol", default="nt")
    ap.add_argument("--stamps", action="store_true")
    ap.add_argument("--nstat", type=int, default=24)
    ap.add_argument("--psl0", type=int, default=64)
    ap.add_argument("--psl", type=int, default=12)
    ap.add_argument("--pace", type=int, default=1)
    ap.add_argument("--pmode", type=int, default=0)
    ap.add_argument("--early", type=int, default=0)
    args = ap.parse_args()
    open(args.o, "w").write(gen(args.pol, args.stamps, args.nstat, args.psl0, args.psl, args.pace, args.pmode, args.early))

main()
```

```python
import struct, sys, argparse

def f32bits(x):
    return struct.unpack("<I", struct.pack("<f", x))[0]

LOG2E = 1.4426950408889634
NAME = "recurrent_scan__gqa_block_cached__dense_activation_gelu__decode"
HEADER = open(f"cdna_kernels/{NAME}.s.ref").read().split("; Override launch")[0]

WS_Q = 0x0
WS_H = 0x10000
WS_CTR = 0x1F000
WS_PO = 0x20000
WS_ML = 0xA0000
WS_P3 = 0xB0000
WS_SIZE = 0x40000000
LDS_W = 131072
LDS_XN = 16384
LDS_WQ = 0
LDS_W1 = 131072
LDS_GO = 163832
LDS_ACT = 4096
SPIN_MAX = 1 << 17

class A:
    def __init__(self):
        self.l = []
    def __call__(self, s):
        self.l.append("    " + s)
    def label(self, s):
        self.l.append(s + ":")
    def raw(self, s):
        self.l.append(s)
    def text(self):
        return "\n".join(self.l) + "\n"

def srd(a, d, p, size):
    a(f"s_mov_b32 s{d}, s{p}")
    a(f"s_and_b32 s{d+1}, s{p+1}, 0xffff")
    a(f"s_mov_b32 s{d+2}, {size:#x}")
    a(f"s_mov_b32 s{d+3}, 0x00020000")

def xlane_reduce_g(a, op, v, t):
    a(f"v_mov_b32 v{t}, v{v}")
    a("s_nop 1")
    a(f"v_permlane16_swap_b32 v{v}, v{t}")
    a("s_nop 1")
    a(f"{op} v{v}, v{v}, v{t}")
    a(f"v_mov_b32 v{t}, v{v}")
    a("s_nop 1")
    a(f"v_permlane32_swap_b32 v{v}, v{t}")
    a("s_nop 1")
    a(f"{op} v{v}, v{v}, v{t}")

def reduce32_add(a, v, t):
    for pat in ("quad_perm:[1,0,3,2]", "quad_perm:[2,3,0,1]", "row_half_mirror", "row_mirror"):
        a("s_nop 1")
        a(f"v_add_f32_dpp v{v}, v{v}, v{v} {pat} row_mask:0xf bank_mask:0xf")
    a(f"v_mov_b32 v{t}, v{v}")
    a("s_nop 1")
    a(f"v_permlane16_swap_b32 v{v}, v{t}")
    a("s_nop 1")
    a(f"v_add_f32 v{v}, v{v}, v{t}")

def round_bf16_pair(a, v0, v1, t):
    a(f"v_cvt_pk_bf16_f32 v{t}, v{v0}, v{v1}")
    a(f"v_lshlrev_b32 v{v0}, 16, v{t}")
    a(f"v_and_b32 v{v1}, 0xffff0000, v{t}")

P_X, P_K, P_V, P_WQ, P_WO, P_W1, P_B1, P_W2, P_B2, P_OUT, P_DBG, P_WS = 64, 66, 68, 70, 72, 76, 78, 80, 82, 84, 86, 88

def gen(pol="nt", stamps=False, nstat=24, psl0=64, psl=12, pace=1):
    a = A()
    def stamp(idx):
        if not stamps:
            return
        a("s_memrealtime s[62:63]")
        a("s_waitcnt lgkmcnt(0)")
        a("v_mov_b32 v222, s62")
        a("v_mov_b32 v223, s63")
        a("s_lshl_b32 s62, s2, 7")
        a(f"s_add_u32 s62, s62, {0x200000 + idx*8}")
        a("v_mov_b32 v221, 0")
        a("s_mov_b64 s[90:91], exec")
        a("s_mov_b64 exec, 1")
        a("buffer_store_dwordx2 v[222:223], v221, s[12:15], s62 offen")
        a("s_mov_b64 exec, s[90:91]")

    a.raw(HEADER.rstrip("\n"))
    a.raw("; @launch grid=(256,1,1) block=(256,1,1) lds=163840")
    a.raw('.amdgcn_target "amdgcn-amd-amdhsa--gfx950"')
    name = NAME + "_kernel"
    a.raw(".text")
    a.raw(f".globl {name}")
    a.raw(".p2align 8")
    a.raw(f".type {name},@function")
    a.label(name)
    pol = (" " + pol) if pol else ""
    QF, ACC, KO, VO, KR, VR, KF, VF, S = 16, 48, 112, 120, 128, 132, 140, 172, 204
    M, L, PB = 208, 209, 220
    TS, WM = 32768, 0xfffff

    a("s_cmp_ge_u32 s2, 256")
    a("s_cbranch_scc1 L_end")
    a("s_load_dwordx16 s[64:79], s[0:1], 0")
    a("s_load_dwordx8 s[80:87], s[0:1], 64")
    a("s_load_dwordx2 s[88:89], s[0:1], 96")
    a("v_lshrrev_b32 v1, 6, v0")
    a("v_and_b32 v2, 63, v0")
    a("v_readfirstlane_b32 s3, v1")
    a("v_and_b32 v3, 15, v2")
    a("v_lshrrev_b32 v4, 4, v2")
    a("v_lshrrev_b32 v5, 5, v2")
    a("v_and_b32 v6, 31, v2")
    a("s_lshl_b32 s23, s2, 20")
    a("s_lshl_b32 s22, s3, 13")
    a("s_add_u32 s23, s23, s22")
    a("s_mov_b32 s22, 0")
    a("s_mov_b32 s27, 0x80000000")
    a("s_lshl_b32 s25, s3, 15")
    for k in range(8):
        a(f"s_add_u32 s{32+k}, s25, {k*4096}")
    a(f"s_mul_i32 s44, s2, {(1<<16)//7+1}")
    a("s_lshr_b32 s44, s44, 16")
    a("s_mul_i32 s45, s44, 7")
    a("s_sub_u32 s45, s2, s45")
    a("s_and_b32 s46, s2, 7")
    a("s_lshr_b32 s47, s2, 3")
    a("v_lshlrev_b32 v8, 9, v5")
    for n in range(8):
        add = 4096 if n >= 4 else 0
        a(f"v_or_b32 v9, {2*n}, v5")
        a("v_xor_b32 v9, v9, v6")
        a(f"v_lshl_add_u32 v{KO+n}, v9, 4, v8")
        if add:
            a(f"v_add_u32 v{KO+n}, {add}, v{KO+n}")
        a(f"v_or_b32 v9, {(2*n)&7}, v5")
        a("v_lshlrev_b32 v9, 1, v9")
        a("v_xor_b32 v9, v9, v6")
        a(f"v_lshl_add_u32 v{VO+n}, v9, 4, v8")
        if add:
            a(f"v_add_u32 v{VO+n}, {add}, v{VO+n}")
    a("v_lshl_add_u32 v7, v1, 1, v5")
    a("v_mul_u32_u24 v7, 896, v7")
    a("v_lshl_add_u32 v7, v6, 2, v7")
    a("s_waitcnt lgkmcnt(0)")
    srd(a, 4, P_K, 0x10000000)
    srd(a, 8, P_V, 0x10000000)
    srd(a, 12, P_WS, WS_SIZE)
    srd(a, 16, P_X, 7168)
    srd(a, 48, P_DBG, 256)

    def issue(kind, slot, soff):
        srdr = "s[4:7]" if kind == "K" else "s[8:11]"
        vo = KO if kind == "K" else VO
        sl = slot + (0 if kind == "K" else 2)
        for half in range(2):
            a(f"s_mov_b32 m0, s{32 + 2*sl + half}")
            a("s_nop 0")
            for q in range(4):
                n = 4*half + q
                off = f" offset:{1024*q}" if q else ""
                a(f"buffer_load_dwordx4 v{vo+n}, {srdr}, {soff} offen{off}{pol} lds")

    def ring_offsets():
        a("s_add_u32 s26, s23, s22")
        a(f"s_add_u32 s22, s22, {TS}")
        a("s_add_u32 s28, s23, s22")
        a(f"s_add_u32 s22, s22, {TS}")

    def go_read():
        a("ds_read_b32 v15, v14")
        a("s_waitcnt lgkmcnt(0)")
        a("v_readfirstlane_b32 s62, v15")

    def ring_paced(tag, mid=None):
        ring_offsets()
        a(f"v_mov_b32 v14, {LDS_GO}")
        a("s_mov_b32 s62, 0")
        issue("K", 0, "s26")
        if mid: mid()
        for k, (kind, slot, so_) in enumerate((("V", 0, "s26"), ("K", 1, "s28"), ("V", 1, "s28"))):
            a("s_cmp_lg_u32 s62, 0")
            a(f"s_cbranch_scc1 L_rp{tag}{k}")
            a("s_waitcnt vmcnt(0)")
            go_read()
            a.label(f"L_rp{tag}{k}")
            issue(kind, slot, so_)

    def wait_go(tag):
        a("s_mov_b32 s63, 0")
        a.label(f"L_wg{tag}")
        a("s_cmp_lg_u32 s62, 0")
        a(f"s_cbranch_scc1 L_wgd{tag}")
        a("s_add_u32 s63, s63, 1")
        a(f"s_cmp_ge_u32 s63, {SPIN_MAX*16}")
        a(f"s_cbranch_scc1 L_wgd{tag}")
        a("s_sleep 1")
        go_read()
        a(f"s_branch L_wg{tag}")
        a.label(f"L_wgd{tag}")

    XD, XF = 72, 80
    def x_loads():
        for k in range(7):
            a(f"buffer_load_dword v{XD+k}, v7, s[16:19], 0 offen offset:{128*k}")

    def layernorm():
        for k in range(7):
            a(f"v_lshlrev_b32 v{XF+2*k}, 16, v{XD+k}")
            a(f"v_and_b32 v{XF+2*k+1}, 0xffff0000, v{XD+k}")
        a(f"v_add_f32 v94, v{XF}, v{XF+1}")
        a(f"v_add_f32 v95, v{XF+2}, v{XF+3}")
        for k in range(4, 14, 2):
            a(f"v_add_f32 v94, v94, v{XF+k}")
            a(f"v_add_f32 v95, v95, v{XF+k+1}")
        a("v_add_f32 v94, v94, v95")
        reduce32_add(a, 94, 95)
        a(f"v_mul_f32 v94, {f32bits(1.0/448):#x}, v94")
        a(f"v_sub_f32 v96, v{XF}, v94")
        a("v_mul_f32 v97, v96, v96")
        a(f"v_sub_f32 v96, v{XF+1}, v94")
        a("v_mul_f32 v98, v96, v96")
        for k in range(2, 14):
            a(f"v_sub_f32 v96, v{XF+k}, v94")
            a(f"v_fmac_f32 v{97+(k&1)}, v96, v96")
        a("v_add_f32 v97, v97, v98")
        reduce32_add(a, 97, 95)
        a(f"v_mul_f32 v97, {f32bits(1.0/448):#x}, v97")
        round_bf16_pair(a, 94, 97, 95)
        a(f"v_add_f32 v97, {f32bits(1e-5):#x}, v97")
        round_bf16_pair(a, 97, 96, 95)
        a("v_sqrt_f32 v97, v97")
        a("s_nop 0")
        round_bf16_pair(a, 97, 96, 95)
        a("v_rcp_f32 v98, v97")
        a("s_nop 0")
        for k in range(7):
            f0, f1 = XF+2*k, XF+2*k+1
            a(f"v_sub_f32 v{f0}, v{f0}, v94")
            a(f"v_sub_f32 v{f1}, v{f1}, v94")
            round_bf16_pair(a, f0, f1, 95)
            a(f"v_mul_f32 v96, v{f0}, v98")
            a(f"v_mul_f32 v99, v{f1}, v98")
            a(f"v_fma_f32 v{f0}, -v96, v97, v{f0}")
            a(f"v_fma_f32 v{f1}, -v99, v97, v{f1}")
            a(f"v_fmac_f32 v96, v{f0}, v98")
            a(f"v_fmac_f32 v99, v{f1}, v98")
            a(f"v_cvt_pk_bf16_f32 v{XD+k}, v96, v99")
        for k in range(7):
            a(f"ds_write_b32 v7, v{XD+k} offset:{LDS_XN+128*k}")
        a("s_waitcnt lgkmcnt(0)")

    def proj_dma(is_h):
        stride = 3584 if is_h else 8192
        ldsbase = LDS_W1 if is_h else LDS_WQ
        srd(a, 92, P_W1 if is_h else P_WQ, 448*stride)
        if is_h:
            a("s_mul_i32 s54, s46, 14")
        else:
            a("s_lshl_b32 s54, s46, 5")
        a("s_add_u32 s54, s54, s47")
        a("s_lshl_b32 s55, s54, 5")
        a("v_lshrrev_b32 v10, 1, v2")
        a(f"v_mul_u32_u24 v10, {stride}, v10")
        a("v_and_b32 v11, 1, v2")
        a("v_lshl_add_u32 v10, v11, 4, v10")
        a("s_mov_b32 s56, s55")
        for n in range(14):
            a(f"s_mov_b32 m0, {ldsbase + n*1024}")
            a("s_nop 0")
            a("buffer_load_dwordx4 v10, s[92:95], s56 offen lds")
            if n < 13:
                a(f"s_add_u32 s56, s56, {32*stride}")
        if is_h:
            srd(a, 28, P_B1, 3584)
            a("v_lshlrev_b32 v11, 1, v3")
            a("buffer_load_ushort v104, v11, s[28:31], s55 offen")

    XA, B, D = 140, 48, 196
    def proj_areads():
        a("v_and_b32 v10, 7, v3")
        a("v_mul_u32_u24 v10, 896, v10")
        a("v_lshl_add_u32 v10, v4, 4, v10")
        for s in range(14):
            a(f"ds_read_b128 v[{XA+4*s}:{XA+4*s+3}], v10 offset:{LDS_XN+64*s}")
        a("s_waitcnt lgkmcnt(0)")

    def h_store_addr():
        a("v_lshrrev_b32 v105, 2, v2")
        a("v_mul_u32_u24 v105, 7168, v105")
        a("v_and_b32 v106, 3, v2")
        a("v_lshl_add_u32 v105, v106, 4, v105")
        a("s_mul_i32 s57, s46, 14")
        a("s_add_u32 s57, s57, s47")
        a("s_lshl_b32 s57, s57, 6")
        a(f"s_add_u32 s57, s57, {WS_H}")

    def proj_gemm(is_h):
        ldsbase = LDS_W1 if is_h else LDS_WQ
        T = (16384 if is_h else 24576)
        lb = 0
        a("v_lshrrev_b32 v11, 2, v3")
        a("v_lshl_add_u32 v11, v4, 3, v11")
        a("v_lshlrev_b32 v11, 5, v11")
        a("v_and_b32 v12, 3, v3")
        a("v_lshl_add_u32 v11, v12, 3, v11")
        if is_h:
            a(f"v_add_u32 v11, {ldsbase}, v11")
        a(f"s_waitcnt vmcnt({8 if is_h else 0})")
        if not is_h:
            stamp(3)
        for s in range(14):
            a(f"ds_read_b64_tr_b16 v[{B+4*s}:{B+4*s+1}], v11 offset:{lb+1024*s}")
            a(f"ds_read_b64_tr_b16 v[{B+4*s+2}:{B+4*s+3}], v11 offset:{lb+1024*s+128}")
        a("s_waitcnt lgkmcnt(0)")
        for s in range(14):
            c = "0" if s == 0 else f"v[{D}:{D+3}]"
            a(f"v_mfma_f32_16x16x32_bf16 v[{D}:{D+3}], v[{XA+4*s}:{XA+4*s+3}], v[{B+4*s}:{B+4*s+3}], {c}")
        if is_h:
            a("v_lshlrev_b32 v10, 8, v4")
            a("v_lshl_add_u32 v10, v3, 2, v10")
            a(f"v_add_u32 v10, {ldsbase}, v10")
        else:
            a("v_lshlrev_b32 v10, 7, v4")
            a("v_lshl_add_u32 v10, v3, 1, v10")
        a("v_lshlrev_b32 v13, 4, v2")
        if is_h:
            a(f"v_add_u32 v13, {ldsbase}, v13")
        a("s_nop 7")
        if is_h:
            a("v_lshlrev_b32 v104, 16, v104")
            for p in range(2):
                round_bf16_pair(a, D+2*p, D+2*p+1, 11)
            for r in range(4):
                a(f"v_add_f32 v{D+r}, v{D+r}, v104")
            for p in range(2):
                round_bf16_pair(a, D+2*p, D+2*p+1, 11)
            kk = -2.0 * LOG2E * 0.7978845608028654
            for r in range(4):
                x = D + r
                a(f"v_mul_f32 v12, v{x}, v{x}")
                a(f"v_mul_f32 v12, {f32bits(0.044715):#x}, v12")
                a(f"v_fma_f32 v12, v12, v{x}, v{x}")
                a(f"v_mul_f32 v12, {f32bits(kk):#x}, v12")
                a("v_exp_f32 v12, v12")
                a("s_nop 0")
                a("v_add_f32 v12, 1.0, v12")
                a("v_rcp_f32 v12, v12")
                a("s_nop 0")
                a(f"v_mul_f32 v{x}, v{x}, v12")
            for p in range(2):
                round_bf16_pair(a, D+2*p, D+2*p+1, 11)
            for r in range(4):
                a(f"v_or_b32 v{D+r}, 1, v{D+r}")
            a("v_cmp_gt_u32 vcc, 32, v2")
            a("s_and_saveexec_b64 s[60:61], vcc")
            for r in range(4):
                a(f"ds_write_b32 v10, v{D+r} offset:{T+64*r}")
            a("s_waitcnt lgkmcnt(0)")
            a(f"ds_read_b128 v[{D}:{D+3}], v13 offset:{T}")
            a("s_waitcnt lgkmcnt(0)")
            a(f"buffer_store_dwordx4 v[{D}:{D+3}], v105, s[12:15], s57 offen sc0 sc1")
            a("s_mov_b64 exec, s[60:61]")
        else:
            a(f"v_cvt_pk_bf16_f32 v12, v{D}, v{D+1}")
            a(f"v_cvt_pk_bf16_f32 v14, v{D+2}, v{D+3}")
            a("v_cmp_gt_u32 vcc, 32, v2")
            a("s_and_saveexec_b64 s[60:61], vcc")
            a(f"ds_write_b16 v10, v12 offset:{T}")
            a(f"ds_write_b16_d16_hi v10, v12 offset:{T+32}")
            a(f"ds_write_b16 v10, v14 offset:{T+64}")
            a(f"ds_write_b16_d16_hi v10, v14 offset:{T+96}")
            a("s_mov_b64 exec, s[60:61]")
            a("v_lshrrev_b32 v11, 1, v2")
            a("v_lshlrev_b32 v11, 13, v11")
            a("v_and_b32 v12, 1, v2")
            a("v_lshl_add_u32 v11, v12, 4, v11")
            a("v_cmp_gt_u32 vcc, 16, v2")
            a("s_and_saveexec_b64 s[60:61], vcc")
            a("s_waitcnt lgkmcnt(0)")
            a(f"ds_read_b128 v[{D}:{D+3}], v13 offset:{T}")
            a("s_waitcnt lgkmcnt(0)")
            a(f"buffer_store_dwordx4 v[{D}:{D+3}], v11, s[12:15], s55 offen sc0 sc1")
            a("s_mov_b64 exec, s[60:61]")
            if stamps:
                a("s_memrealtime s[90:91]")
                a("s_waitcnt lgkmcnt(0)")
                a("v_mov_b32 v218, s90")
                a("v_mov_b32 v219, s91")
            a("s_waitcnt vmcnt(0)")
            if stamps:
                a("s_lshl_b32 s62, s2, 7")
                a(f"s_add_u32 s62, s62, {0x200000 + 11*8}")
                a("v_mov_b32 v221, 0")
                a("s_mov_b64 exec, 1")
                a("buffer_store_dwordx2 v[218:219], v221, s[12:15], s62 offen")
                a("s_mov_b64 exec, -1")

    a("s_cmp_eq_u32 s3, 0")
    a("s_cbranch_scc1 L_w0")
    a("s_cmp_eq_u32 s3, 1")
    a("s_cbranch_scc1 L_w1")
    a("s_cmp_eq_u32 s3, 2")
    a("s_cbranch_scc1 L_w2")
    def role_dma(tag):
        a("s_cmp_ge_u32 s2, 161")
        a(f"s_cbranch_scc1 L_rd_done{tag}")
        a("v_lshrrev_b32 v10, 3, v2")
        a("v_mul_u32_u24 v10, 896, v10")
        a("v_and_b32 v11, 7, v2")
        a("v_lshl_add_u32 v10, v11, 4, v10")
        a("s_lshl_b32 s54, s45, 7")
        a("s_cmp_ge_u32 s44, 16")
        a(f"s_cbranch_scc1 L_rd_ffn{tag}")
        srd(a, 92, P_WO, 4096*896)
        a(f"s_mul_i32 s55, s44, {256*896}")
        a("s_add_u32 s54, s54, s55")
        for n in range(32):
            a(f"s_mov_b32 m0, {LDS_W + n*1024}")
            a("s_nop 0")
            a("buffer_load_dwordx4 v10, s[92:95], s54 offen lds")
            if n < 31:
                a(f"s_add_u32 s54, s54, {8*896}")
        a(f"s_branch L_rd_done{tag}")
        a.label(f"L_rd_ffn{tag}")
        srd(a, 92, P_W2, 1792*896)
        a("s_sub_u32 s55, s44, 16")
        a(f"s_mul_i32 s55, s55, {256*896}")
        a("s_add_u32 s54, s54, s55")
        for n in range(32):
            a(f"s_mov_b32 m0, {LDS_W + n*1024}")
            a("s_nop 0")
            a("buffer_load_dwordx4 v10, s[92:95], s54 offen lds")
            if n < 31:
                a(f"s_add_u32 s54, s54, {8*896}")
        a.label(f"L_rd_done{tag}")

    def q_loads():
        a("s_lshr_b32 s24, s2, 2")
        a("s_lshl_b32 s24, s24, 10")
        a("v_and_b32 v7, 1, v3")
        a("v_lshlrev_b32 v7, 9, v7")
        a("v_lshl_add_u32 v7, v4, 4, v7")
        for s in range(8):
            a(f"buffer_load_dwordx4 v[{QF+4*s}:{QF+4*s+3}], v7, s[12:15], s24 offen offset:{64*s} sc0 sc1")

    def zero16():
        for r in range(16, 20):
            a(f"v_mov_b32 v{r}, 0")

    zero16()
    a("v_lshlrev_b32 v10, 4, v2")
    a("s_cmp_ge_u32 s2, 161")
    a("s_cbranch_scc1 L_w3_noclr")
    a("s_mul_i32 s54, s45, 23")
    a("s_add_u32 s54, s54, s44")
    a("s_lshl_b32 s54, s54, 11")
    a(f"s_add_u32 s54, s54, {WS_P3}")
    a("buffer_store_dwordx4 v[16:19], v10, s[12:15], s54 offen sc0 sc1")
    a("buffer_store_dwordx4 v[16:19], v10, s[12:15], s54 offen offset:1024 sc0 sc1")
    a.label("L_w3_noclr")
    x_loads()
    a("s_waitcnt vmcnt(0)")
    layernorm()
    a("s_barrier")
    ring_paced("w3", lambda: a("s_barrier"))
    wait_go("w3")
    q_loads()
    a("s_barrier")
    a("s_branch L_join")
    a.label("L_w2")
    zero16()
    a("v_lshlrev_b32 v10, 4, v2")
    a("s_lshl_b32 s54, s2, 11")
    a(f"s_add_u32 s54, s54, {WS_PO}")
    a("buffer_store_dwordx4 v[16:19], v10, s[12:15], s54 offen sc0 sc1")
    a("buffer_store_dwordx4 v[16:19], v10, s[12:15], s54 offen offset:1024 sc0 sc1")
    a("s_lshl_b32 s54, s2, 4")
    a(f"s_add_u32 s54, s54, {WS_ML}")
    a("v_cmp_eq_u32 vcc, 0, v2")
    a("s_and_saveexec_b64 s[60:61], vcc")
    a("buffer_store_dwordx4 v[16:19], v10, s[12:15], s54 offen sc0 sc1")
    a("s_and_b32 s54, s2, 3")
    a("s_cmp_lg_u32 s54, 0")
    a("s_cbranch_scc1 L_w2_noctr")
    a("s_lshl_b32 s54, s2, 4")
    a(f"s_add_u32 s54, s54, {WS_CTR}")
    a("buffer_store_dwordx4 v[16:19], v10, s[12:15], s54 offen sc0 sc1")
    a.label("L_w2_noctr")
    a("s_mov_b64 exec, s[60:61]")
    x_loads()
    a(f"v_mov_b32 v14, {LDS_GO}")
    a("ds_write_b32 v14, v16")
    a("s_waitcnt vmcnt(0)")
    layernorm()
    a("s_barrier")
    ring_offsets()
    issue("K", 0, "s26")
    a("s_barrier")
    a("v_and_b32 v10, 7, v2")
    a("v_lshlrev_b32 v10, 4, v10")
    a("s_mov_b32 s54, 0")
    a(f"s_sleep {psl0}")
    a.label("L_poll_q")
    a("buffer_load_dword v11, v10, s[48:51], 0 offen offset:128 sc0 sc1")
    a("s_waitcnt vmcnt(0)")
    a("v_cmp_ne_u32 vcc, 32, v11")
    a("s_cbranch_vccz L_poll_q_done")
    a("s_add_u32 s54, s54, 1")
    a(f"s_cmp_ge_u32 s54, {SPIN_MAX}")
    a("s_cbranch_scc1 L_poll_q_done")
    a(f"s_sleep {psl}")
    a("s_branch L_poll_q")
    a.label("L_poll_q_done")
    a("v_mov_b32 v15, 1")
    a("ds_write_b32 v14, v15")
    q_loads()
    issue("V", 0, "s26")
    issue("K", 1, "s28")
    issue("V", 1, "s28")
    a("s_barrier")
    a("s_branch L_join")
    a.label("L_w1")
    a("s_cmp_ge_u32 s47, 14")
    a("s_cbranch_scc1 L_w1_noh")
    h_store_addr()
    zero16()
    a("v_cmp_gt_u32 vcc, 32, v2")
    a("s_and_saveexec_b64 s[60:61], vcc")
    a("buffer_store_dwordx4 v[16:19], v105, s[12:15], s57 offen sc0 sc1")
    a("s_mov_b64 exec, s[60:61]")
    x_loads()
    a("s_waitcnt vmcnt(0)")
    layernorm()
    a("s_barrier")
    proj_areads()
    a("s_barrier")
    ring_paced("w1a")
    proj_dma(True)
    wait_go("w1a")
    q_loads()
    a("s_barrier")
    proj_gemm(True)
    a("s_waitcnt vmcnt(1)")
    role_dma("a")
    a("s_branch L_join2")
    a.label("L_w1_noh")
    x_loads()
    a("s_waitcnt vmcnt(0)")
    layernorm()
    a("s_barrier")
    a("s_barrier")
    ring_paced("w1b")
    wait_go("w1b")
    q_loads()
    a("s_barrier")
    a("s_waitcnt vmcnt(0)")
    role_dma("b")
    a("s_branch L_join2")
    a.label("L_w0")
    stamp(0)
    x_loads()
    proj_dma(False)
    a("s_waitcnt vmcnt(14)")
    layernorm()
    a("s_barrier")
    stamp(1)
    proj_areads()
    a("s_barrier")
    proj_gemm(False)
    a("s_lshl_b32 s54, s46, 4")
    a("v_mov_b32 v10, s54")
    a("v_mov_b32 v11, 1")
    a("v_cmp_eq_u32 vcc, 0, v2")
    a("s_and_saveexec_b64 s[60:61], vcc")
    a("buffer_atomic_add v11, v10, s[48:51], 0 offen sc0")
    a("s_waitcnt vmcnt(0)")
    a("v_cmp_eq_u32 vcc, 31, v11")
    a("s_and_b64 exec, exec, vcc")
    a("s_cbranch_execz L_notlast")
    a("v_mov_b32 v11, 32")
    a("buffer_store_dword v11, v10, s[48:51], 0 offen offset:128 sc0 sc1")
    a.label("L_notlast")
    a("s_mov_b64 exec, s[60:61]")
    stamp(2)
    ring_paced("w0")
    wait_go("w0")
    stamp(4)
    q_loads()
    a("s_barrier")
    a.label("L_join")
    a("s_waitcnt vmcnt(0)")
    a.label("L_join2")
    a("v_xor_b32 v9, v4, v3")
    a("v_and_b32 v9, 3, v9")
    a("v_and_b32 v10, 12, v3")
    a("v_lshlrev_b32 v11, 9, v3")
    a("v_add_u32 v11, s25, v11")
    for q in range(4):
        a(f"v_xor_b32 v12, {4*q}, v10")
        a("v_add_u32 v12, v12, v9")
        a(f"v_lshl_add_u32 v{KR+q}, v12, 4, v11")
    a("v_lshrrev_b32 v9, 2, v3")
    a("v_lshl_add_u32 v9, v4, 2, v9")
    a("v_lshlrev_b32 v11, 9, v9")
    a("v_add_u32 v11, s25, v11")
    a("v_add_u32 v11, 16384, v11")
    a("v_and_b32 v10, 1, v3")
    a("v_lshl_add_u32 v11, v10, 3, v11")
    a("v_bfe_u32 v10, v3, 1, 1")
    a("v_lshl_add_u32 v11, v10, 4, v11")
    a("v_and_b32 v9, 7, v9")
    for nn in range(8):
        a(f"v_xor_b32 v12, {nn}, v9")
        a(f"v_lshl_add_u32 v{VR+nn}, v12, 5, v11")
    for k in range(64):
        a(f"v_mov_b32 v{ACC+k}, 0")
    a(f"v_mov_b32 v{M}, 0xf149f2ca")
    a(f"v_mov_b32 v{L}, 0")
    a(f"s_mov_b32 s30, {f32bits(LOG2E/16):#x}")
    a("s_mov_b32 s24, 0")
    if stamps:
        a("s_cmp_lg_u32 s3, 0")
        a("s_cbranch_scc1 L_st5")
        stamp(5)
        a.label("L_st5")
    a("s_lshr_b32 s31, s2, 2")
    a("s_lshl_b32 s99, s31, 6")
    a(f"s_add_u32 s99, s99, {WS_CTR}")
    a(f"s_add_u32 s96, s{P_WS}, s99")
    a(f"s_addc_u32 s97, s{P_WS+1}, 0")
    a("s_lshl_b32 s31, s31, 22")
    a("s_mov_b32 s99, 1")
    a("s_mov_b32 s100, 1")
    a("s_mov_b32 s98, 0")
    a.label("L_loop")
    for slot in range(2):
        so = slot * 8192
        a(f"s_cmp_eq_u32 s{99+slot}, 0")
        a("s_cbranch_scc1 L_loop_done")
        a("s_waitcnt vmcnt(24)")
        for s in range(8):
            a(f"ds_read_b128 v[{KF+4*s}:{KF+4*s+3}], v{KR+(s&3)} offset:{so + (s>>2)*256}")
        for s in range(8):
            a(f"s_waitcnt lgkmcnt({7-s})")
            c = "0" if s == 0 else f"v[{S}:{S+3}]"
            a(f"v_mfma_f32_16x16x32_bf16 v[{S}:{S+3}], v[{KF+4*s}:{KF+4*s+3}], v[{QF+4*s}:{QF+4*s+3}], {c}")
        a(f"s_cmp_lt_u32 s24, {nstat-2}")
        a(f"s_cbranch_scc0 L_dyn{slot}")
        a("s_add_u32 s29, s23, s22")
        a(f"s_add_u32 s22, s22, {TS}")
        a(f"s_branch L_dynd{slot}")
        a.label(f"L_dyn{slot}")
        a("s_lshr_b32 s26, s98, 5") if (32-nstat)*4 == 32 else a(f"s_lshr_b32 s26, s98, {((32-nstat)*4).bit_length()-1}")
        a("s_lshl_b32 s26, s26, 7")
        a(f"s_and_b32 s28, s98, {(32-nstat)*4-1}")
        a("s_add_u32 s26, s26, s28")
        a(f"s_add_u32 s26, s26, {nstat*4}")
        a("s_lshl_b32 s26, s26, 13")
        a("s_add_u32 s26, s26, s31")
        a(f"s_cmp_lt_u32 s98, {(32-nstat)*16}")
        a("s_cselect_b32 s29, s26, s27")
        a(f"s_cselect_b32 s{99+slot}, 1, 0")
        a.label(f"L_dynd{slot}")
        issue("K", slot, "s29")
        round_bf16_pair(a, S, S+1, 210)
        round_bf16_pair(a, S+2, S+3, 211)
        a(f"v_max3_f32 v212, v{S}, v{S+1}, v{S+2}")
        a(f"v_max_f32 v212, v212, v{S+3}")
        xlane_reduce_g(a, "v_max_f32", 212, 213)
        a(f"v_max_f32 v212, v212, v{M}")
        a(f"v_sub_f32 v213, v{M}, v212")
        a(f"v_mov_b32 v{M}, v212")
        a("v_mul_f32 v213, s30, v213")
        for r in range(4):
            a(f"v_sub_f32 v{S+r}, v{S+r}, v212")
        a("v_exp_f32 v213, v213")
        for r in range(4):
            a(f"v_mul_f32 v{S+r}, s30, v{S+r}")
        for r in range(4):
            a(f"v_exp_f32 v{S+r}, v{S+r}")
        a("s_nop 0")
        a(f"v_add_f32 v214, v{S}, v{S+1}")
        a(f"v_add_f32 v215, v{S+2}, v{S+3}")
        a(f"v_cvt_pk_bf16_f32 v{PB}, v{S}, v{S+1}")
        a(f"v_cvt_pk_bf16_f32 v{PB+1}, v{S+2}, v{S+3}")
        a("v_add_f32 v214, v214, v215")
        a(f"v_fma_f32 v{L}, v{L}, v213, v214")
        for k in range(64):
            a(f"v_mul_f32 v{ACC+k}, v213, v{ACC+k}")
        a("s_waitcnt vmcnt(24)")
        for n in range(16):
            a(f"ds_read_b64_tr_b16 v[{VF+2*n}:{VF+2*n+1}], v{VR+(n&7)} offset:{so + (n>>3)*256}")
        for n in range(16):
            a(f"s_waitcnt lgkmcnt({15-n})")
            a(f"v_mfma_f32_16x16x16_bf16 v[{ACC+4*n}:{ACC+4*n+3}], v[{VF+2*n}:{VF+2*n+1}], v[{PB}:{PB+1}], v[{ACC+4*n}:{ACC+4*n+3}]")
        issue("V", slot, "s29")
        a("s_add_u32 s24, s24, 1")
        a(f"s_cmp_lt_u32 s24, {nstat-2}")
        a(f"s_cbranch_scc1 L_nocl{slot}")
        a("s_mov_b32 s98, 1")
        a("s_atomic_add s98, s[96:97], 0x0 glc")
        a.label(f"L_nocl{slot}")
    a("s_branch L_loop")
    a.label("L_loop_done")
    a("s_waitcnt lgkmcnt(0)")
    if stamps:
        a("s_cmp_lg_u32 s3, 0")
        a("s_cbranch_scc1 L_st6")
        stamp(6)
        a.label("L_st6")
    xlane_reduce_g(a, "v_add_f32", L, 213)
    a("s_waitcnt vmcnt(0)")
    a("v_lshlrev_b32 v9, 10, v3")
    a("v_lshl_add_u32 v9, v4, 4, v9")
    a("v_add_u32 v9, s25, v9")
    a("v_lshlrev_b32 v10, 3, v3")
    a("v_add_u32 v10, s25, v10")
    a("v_cmp_gt_u32 vcc, 2, v3")
    a("s_and_saveexec_b64 s[40:41], vcc")
    for n in range(16):
        a(f"ds_write_b128 v9, v[{ACC+4*n}:{ACC+4*n+3}] offset:{64*n}")
    a(f"ds_write_b64 v10, v[{M}:{L}] offset:2048")
    a("s_mov_b64 exec, s[40:41]")
    a("s_waitcnt lgkmcnt(0)")
    a("s_barrier")
    a("v_lshrrev_b32 v9, 7, v0")
    a("v_and_b32 v10, 127, v0")
    a("v_lshlrev_b32 v11, 3, v9")
    a("v_lshlrev_b32 v12, 10, v9")
    a("v_lshl_add_u32 v12, v10, 3, v12")
    a("v_add_u32 v13, 0x10000, v11")
    a("v_add_u32 v14, 0x10000, v12")
    for w in range(4):
        a(f"ds_read_b64 v[{20+2*w}:{21+2*w}], v{11 if w < 2 else 13} offset:{(w&1)*32768+2048}")
    for w in range(4):
        a(f"ds_read_b64 v[{30+2*w}:{31+2*w}], v{12 if w < 2 else 14} offset:{(w&1)*32768}")
    a("s_waitcnt lgkmcnt(0)")
    a("v_max3_f32 v40, v20, v22, v24")
    a("v_max_f32 v40, v40, v26")
    for w in range(4):
        a(f"v_sub_f32 v{20+2*w}, v{20+2*w}, v40")
        a(f"v_mul_f32 v{20+2*w}, s30, v{20+2*w}")
        a(f"v_exp_f32 v{20+2*w}, v{20+2*w}")
    a("s_nop 0")
    a("v_mul_f32 v41, v20, v21")
    a("v_mul_f32 v42, v20, v30")
    a("v_mul_f32 v43, v20, v31")
    for w in range(1, 4):
        a(f"v_fmac_f32 v41, v{20+2*w}, v{21+2*w}")
        a(f"v_fmac_f32 v42, v{20+2*w}, v{30+2*w}")
        a(f"v_fmac_f32 v43, v{20+2*w}, v{31+2*w}")
    for r in range(40, 44):
        a(f"v_or_b32 v{r}, 1, v{r}")
    a("s_lshl_b32 s24, s2, 11")
    a(f"s_add_u32 s24, s24, {WS_PO}")
    a("buffer_store_dwordx2 v[42:43], v12, s[12:15], s24 offen sc0 sc1")
    a("s_lshl_b32 s24, s2, 4")
    a(f"s_add_u32 s24, s24, {WS_ML}")
    a("v_cmp_eq_u32 vcc, 0, v10")
    a("s_and_saveexec_b64 s[40:41], vcc")
    a("buffer_store_dwordx2 v[40:41], v11, s[12:15], s24 offen sc0 sc1")
    a("s_mov_b64 exec, s[40:41]")
    if stamps:
        a("s_cmp_lg_u32 s3, 0")
        a("s_cbranch_scc1 L_st7")
        stamp(7)
        a.label("L_st7")
    a("v_lshrrev_b32 v7, 5, v0")
    a("v_and_b32 v8, 31, v0")
    a("s_cmp_ge_u32 s2, 168")
    a("s_cbranch_scc1 L_end")
    a("s_cmp_ge_u32 s2, 161")
    a("s_cbranch_scc1 L_final")
    a("s_cmp_ge_u32 s44, 16")
    a("s_cbranch_scc1 L_r_ffn")
    a("v_lshlrev_b32 v9, 16, v7")
    a("v_lshl_add_u32 v9, v8, 5, v9")
    a("s_lshr_b32 s54, s44, 1")
    a("s_lshl_b32 s54, s54, 13")
    a("s_and_b32 s55, s44, 1")
    a("s_lshl_b32 s56, s55, 10")
    a("s_add_u32 s54, s54, s56")
    a(f"s_add_u32 s54, s54, {WS_PO}")
    a("s_add_u32 s57, s54, 4096")
    a("v_lshlrev_b32 v10, 9, v7")
    a("s_lshr_b32 s58, s44, 1")
    a("s_lshl_b32 s58, s58, 6")
    a("s_lshl_b32 s56, s55, 3")
    a("s_add_u32 s58, s58, s56")
    a(f"s_add_u32 s58, s58, {WS_ML}")
    a("s_mov_b32 s59, 0")
    a.label("L_poll_p")
    for sp in range(4):
        so_ = "s54" if sp < 2 else "s57"
        a(f"buffer_load_dwordx4 v[{16+8*sp}:{19+8*sp}], v9, s[12:15], {so_} offen offset:{(sp&1)*2048} sc0 sc1")
        a(f"buffer_load_dwordx4 v[{20+8*sp}:{23+8*sp}], v9, s[12:15], {so_} offen offset:{(sp&1)*2048+16} sc0 sc1")
    for sp in range(4):
        a(f"buffer_load_dwordx2 v[{48+2*sp}:{49+2*sp}], v10, s[12:15], s58 offen offset:{sp*16} sc0 sc1")
    a("s_waitcnt vmcnt(0)")
    a("v_and_b32 v56, v16, v17")
    a("v_and_b32 v57, v18, v19")
    for r in range(20, 56, 2):
        a(f"v_and_b32 v56, v56, v{r}")
        a(f"v_and_b32 v57, v57, v{r+1}")
    a("v_and_b32 v56, v56, v57")
    a("v_and_b32 v56, 1, v56")
    a("v_cmp_eq_u32 vcc, 0, v56")
    a("s_cbranch_vccz L_poll_p_done")
    a("s_add_u32 s59, s59, 1")
    a(f"s_cmp_ge_u32 s59, {SPIN_MAX}")
    a("s_cbranch_scc1 L_poll_p_done")
    a("s_sleep 2")
    a("s_branch L_poll_p")
    a.label("L_poll_p_done")
    a("v_max3_f32 v56, v48, v50, v52")
    a("v_max_f32 v56, v56, v54")
    for sp in range(4):
        a(f"v_sub_f32 v{48+2*sp}, v{48+2*sp}, v56")
        a(f"v_mul_f32 v{48+2*sp}, s30, v{48+2*sp}")
        a(f"v_exp_f32 v{48+2*sp}, v{48+2*sp}")
    a("s_nop 0")
    a("v_mul_f32 v57, v48, v49")
    for sp in range(1, 4):
        a(f"v_fmac_f32 v57, v{48+2*sp}, v{49+2*sp}")
    a("v_rcp_f32 v57, v57")
    a("s_nop 0")
    for sp in range(4):
        a(f"v_mul_f32 v{48+2*sp}, v{48+2*sp}, v57")
    for e in range(8):
        a(f"v_mul_f32 v{16+e}, v48, v{16+e}")
        for sp in range(1, 4):
            a(f"v_fmac_f32 v{16+e}, v{48+2*sp}, v{16+8*sp+e}")
    for p in range(4):
        a(f"v_cvt_pk_bf16_f32 v{60+p}, v{16+2*p}, v{17+2*p}")
    a("s_branch L_r_act")
    a.label("L_r_ffn")
    a("v_mul_u32_u24 v9, 7168, v7")
    a("v_lshl_add_u32 v9, v8, 5, v9")
    a("s_sub_u32 s54, s44, 16")
    a("s_lshl_b32 s54, s54, 10")
    a(f"s_add_u32 s54, s54, {WS_H}")
    a("s_mov_b32 s59, 0")
    a.label("L_poll_h")
    a("buffer_load_dwordx4 v[16:19], v9, s[12:15], s54 offen sc0 sc1")
    a("buffer_load_dwordx4 v[20:23], v9, s[12:15], s54 offen offset:16 sc0 sc1")
    a("s_waitcnt vmcnt(0)")
    a("v_and_b32 v56, v16, v17")
    a("v_and_b32 v57, v18, v19")
    a("v_and_b32 v56, v56, v20")
    a("v_and_b32 v57, v57, v21")
    a("v_and_b32 v56, v56, v22")
    a("v_and_b32 v57, v57, v23")
    a("v_and_b32 v56, v56, v57")
    a("v_and_b32 v56, 1, v56")
    a("v_cmp_eq_u32 vcc, 0, v56")
    a("s_cbranch_vccz L_poll_h_done")
    a("s_add_u32 s59, s59, 1")
    a(f"s_cmp_ge_u32 s59, {SPIN_MAX}")
    a("s_cbranch_scc1 L_poll_h_done")
    a("s_sleep 2")
    a("s_branch L_poll_h")
    a.label("L_poll_h_done")
    for p in range(4):
        a(f"v_cvt_pk_bf16_f32 v{60+p}, v{16+2*p}, v{17+2*p}")
    a.label("L_r_act")
    if stamps:
        a("s_cmp_lg_u32 s3, 0")
        a("s_cbranch_scc1 L_st8")
        stamp(8)
        a.label("L_st8")
    a("v_lshlrev_b32 v9, 9, v7")
    a("v_lshl_add_u32 v9, v8, 4, v9")
    a(f"ds_write_b128 v9, v[60:63] offset:{LDS_ACT}")
    a("s_waitcnt lgkmcnt(0)")
    a("s_barrier")
    a("v_and_b32 v9, 7, v3")
    a("v_lshlrev_b32 v9, 9, v9")
    a("v_lshl_add_u32 v9, v4, 4, v9")
    a("v_lshrrev_b32 v10, 2, v3")
    a("v_lshl_add_u32 v10, v4, 3, v10")
    a("v_lshlrev_b32 v10, 7, v10")
    a("v_and_b32 v11, 3, v3")
    a("v_lshl_add_u32 v10, v11, 3, v10")
    a("s_lshl_b32 s54, s3, 5")
    a(f"s_add_u32 s54, s54, {LDS_W}")
    a("v_add_u32 v10, s54, v10")
    for s in range(8):
        a(f"ds_read_b128 v[{64+4*s}:{67+4*s}], v9 offset:{LDS_ACT+64*s}")
        a(f"ds_read_b64_tr_b16 v[{96+4*s}:{97+4*s}], v10 offset:{4096*s}")
        a(f"ds_read_b64_tr_b16 v[{98+4*s}:{99+4*s}], v10 offset:{4096*s+512}")
    a("s_waitcnt lgkmcnt(0)")
    for s in range(8):
        c = "0" if s == 0 else "v[128:131]"
        a(f"v_mfma_f32_16x16x32_bf16 v[128:131], v[{64+4*s}:{67+4*s}], v[{96+4*s}:{99+4*s}], {c}")
    a("v_lshlrev_b32 v9, 10, v4")
    a("v_lshl_add_u32 v9, v3, 2, v9")
    a("s_mul_i32 s54, s45, 23")
    a("s_add_u32 s54, s54, s44")
    a("s_lshl_b32 s54, s54, 11")
    a("s_lshl_b32 s55, s3, 6")
    a("s_add_u32 s54, s54, s55")
    a(f"s_add_u32 s54, s54, {WS_P3}")
    a("s_nop 4")
    for r in range(4):
        a(f"v_or_b32 v{128+r}, 1, v{128+r}")
    a("v_cmp_gt_u32 vcc, 32, v2")
    a("s_and_saveexec_b64 s[40:41], vcc")
    for r in range(4):
        a(f"buffer_store_dword v{128+r}, v9, s[12:15], s54 offen offset:{256*r} sc0 sc1")
    a("s_mov_b64 exec, s[40:41]")
    if stamps:
        a("s_cmp_lg_u32 s3, 0")
        a("s_cbranch_scc1 L_st9")
        stamp(9)
        a.label("L_st9")
    a("s_endpgm")
    a.label("L_final")
    a("s_sub_u32 s45, s2, 161")
    srd(a, 20, P_B2, 896)
    srd(a, 28, P_OUT, 7168)
    a("v_lshlrev_b32 v9, 8, v7")
    a("v_lshl_add_u32 v9, v8, 3, v9")
    a("v_mul_u32_u24 v10, 896, v7")
    a("v_lshl_add_u32 v10, v8, 2, v10")
    a("s_lshl_b32 s57, s45, 7")
    a("v_lshlrev_b32 v11, 2, v8")
    a("buffer_load_dword v64, v10, s[16:19], s57 offen")
    a("buffer_load_dword v65, v11, s[20:23], s57 offen")
    a("s_mov_b32 s59, 0")
    a.label("L_poll_f")
    a(f"s_mul_i32 s54, s45, {23*2048}")
    a(f"s_add_u32 s54, s54, {WS_P3}")
    for ks in range(23):
        a(f"buffer_load_dwordx2 v[{16+2*ks}:{17+2*ks}], v9, s[12:15], s54 offen offset:{(ks&1)*2048} sc0 sc1")
        if ks & 1:
            a("s_add_u32 s54, s54, 4096")
    a("s_waitcnt vmcnt(0)")
    a("v_and_b32 v66, v16, v17")
    a("v_and_b32 v67, v18, v19")
    for r in range(20, 62, 2):
        a(f"v_and_b32 v66, v66, v{r}")
        a(f"v_and_b32 v67, v67, v{r+1}")
    a("v_and_b32 v66, v66, v67")
    a("v_and_b32 v66, 1, v66")
    a("v_cmp_eq_u32 vcc, 0, v66")
    a("s_cbranch_vccz L_poll_f_done")
    a("s_add_u32 s59, s59, 1")
    a(f"s_cmp_ge_u32 s59, {SPIN_MAX}")
    a("s_cbranch_scc1 L_poll_f_done")
    a("s_sleep 2")
    a("s_branch L_poll_f")
    a.label("L_poll_f_done")
    if stamps:
        a("s_cmp_lg_u32 s3, 0")
        a("s_cbranch_scc1 L_st10")
        stamp(10)
        a.label("L_st10")
    for ks in range(1, 16):
        a(f"v_add_f32 v16, v16, v{16+2*ks}")
        a(f"v_add_f32 v17, v17, v{17+2*ks}")
    for ks in range(17, 23):
        a(f"v_add_f32 v48, v48, v{16+2*ks}")
        a(f"v_add_f32 v49, v49, v{17+2*ks}")
    round_bf16_pair(a, 16, 17, 12)
    round_bf16_pair(a, 48, 49, 12)
    a("v_lshlrev_b32 v66, 16, v65")
    a("v_and_b32 v67, 0xffff0000, v65")
    a("v_add_f32 v48, v48, v66")
    a("v_add_f32 v49, v49, v67")
    round_bf16_pair(a, 48, 49, 12)
    for r in range(2):
        a(f"v_mul_f32 v12, {f32bits(-LOG2E):#x}, v{48+r}")
        a("v_exp_f32 v12, v12")
        a("s_nop 0")
        a("v_add_f32 v12, 1.0, v12")
        a("v_rcp_f32 v12, v12")
        a("s_nop 0")
        a(f"v_mul_f32 v{48+r}, v{48+r}, v12")
    round_bf16_pair(a, 48, 49, 12)
    a("v_mul_f32 v16, v16, v48")
    a("v_mul_f32 v17, v17, v49")
    round_bf16_pair(a, 16, 17, 12)
    a("v_lshlrev_b32 v66, 16, v64")
    a("v_and_b32 v67, 0xffff0000, v64")
    a("v_add_f32 v16, v16, v66")
    a("v_add_f32 v17, v17, v67")
    a("v_cvt_pk_bf16_f32 v12, v16, v17")
    a("buffer_store_dword v12, v10, s[28:31], s57 offen")
    a.label("L_end")
    a("s_endpgm")
    a.raw('.section .rodata,"a"')
    a.raw(".p2align 6")
    a.raw(f".amdhsa_kernel {name}")
    a.raw("  .amdhsa_next_free_vgpr 224")
    a.raw("  .amdhsa_next_free_sgpr 102")
    a.raw("  .amdhsa_accum_offset 224")
    a.raw("  .amdhsa_group_segment_fixed_size 0")
    a.raw("  .amdhsa_kernarg_size 104")
    a.raw("  .amdhsa_user_sgpr_count 2")
    a.raw("  .amdhsa_user_sgpr_kernarg_segment_ptr 1")
    a.raw("  .amdhsa_system_sgpr_workgroup_id_x 1")
    a.raw(".end_amdhsa_kernel")
    return a.text()

def main():
    ap = argparse.ArgumentParser()
    ap.add_argument("-o", default=f"cdna_kernels/{NAME}.s")
    ap.add_argument("--pol", default="nt")
    ap.add_argument("--stamps", action="store_true")
    ap.add_argument("--nstat", type=int, default=24)
    ap.add_argument("--psl0", type=int, default=64)
    ap.add_argument("--psl", type=int, default=12)
    ap.add_argument("--pace", type=int, default=1)
    args = ap.parse_args()
    open(args.o, "w").write(gen(args.pol, args.stamps, args.nstat, args.psl0, args.psl, args.pace))

main()
```

```python
import struct, sys, argparse

def f32bits(x):
    return struct.unpack("<I", struct.pack("<f", x))[0]

LOG2E = 1.4426950408889634
NAME = "recurrent_scan__gqa_block_cached__dense_activation_gelu__decode"
HEADER = open(f"cdna_kernels/{NAME}.s.ref").read().split("; Override launch")[0]

WS_Q = 0x0
WS_H = 0x10000
WS_CTR = 0x1F000
WS_PO = 0x20000
WS_ML = 0xA0000
WS_P3 = 0xB0000
WS_SIZE = 0x40000000
LDS_W = 131072
LDS_XN = 16384
LDS_WQ = 0
LDS_W1 = 131072
LDS_GO = 163832
LDS_ACT = 4096
SPIN_MAX = 1 << 17

class A:
    def __init__(self):
        self.l = []
    def __call__(self, s):
        self.l.append("    " + s)
    def label(self, s):
        self.l.append(s + ":")
    def raw(self, s):
        self.l.append(s)
    def text(self):
        return "\n".join(self.l) + "\n"

def srd(a, d, p, size):
    a(f"s_mov_b32 s{d}, s{p}")
    a(f"s_and_b32 s{d+1}, s{p+1}, 0xffff")
    a(f"s_mov_b32 s{d+2}, {size:#x}")
    a(f"s_mov_b32 s{d+3}, 0x00020000")

def xlane_reduce_g(a, op, v, t):
    a(f"v_mov_b32 v{t}, v{v}")
    a("s_nop 1")
    a(f"v_permlane16_swap_b32 v{v}, v{t}")
    a("s_nop 1")
    a(f"{op} v{v}, v{v}, v{t}")
    a(f"v_mov_b32 v{t}, v{v}")
    a("s_nop 1")
    a(f"v_permlane32_swap_b32 v{v}, v{t}")
    a("s_nop 1")
    a(f"{op} v{v}, v{v}, v{t}")

def reduce32_add(a, v, t):
    for pat in ("quad_perm:[1,0,3,2]", "quad_perm:[2,3,0,1]", "row_half_mirror", "row_mirror"):
        a("s_nop 1")
        a(f"v_add_f32_dpp v{v}, v{v}, v{v} {pat} row_mask:0xf bank_mask:0xf")
    a(f"v_mov_b32 v{t}, v{v}")
    a("s_nop 1")
    a(f"v_permlane16_swap_b32 v{v}, v{t}")
    a("s_nop 1")
    a(f"v_add_f32 v{v}, v{v}, v{t}")

def round_bf16_pair(a, v0, v1, t):
    a(f"v_cvt_pk_bf16_f32 v{t}, v{v0}, v{v1}")
    a(f"v_lshlrev_b32 v{v0}, 16, v{t}")
    a(f"v_and_b32 v{v1}, 0xffff0000, v{t}")

P_X, P_K, P_V, P_WQ, P_WO, P_W1, P_B1, P_W2, P_B2, P_OUT, P_DBG, P_WS = 64, 66, 68, 70, 72, 76, 78, 80, 82, 84, 86, 88

def gen(pol="nt", stamps=False, nstat=24, psl0=64, psl=12, pace=1, pmode=0, early=0, tsl=2):
    a = A()
    def stamp(idx):
        if not stamps:
            return
        a("s_memrealtime s[62:63]")
        a("s_waitcnt lgkmcnt(0)")
        a("v_mov_b32 v222, s62")
        a("v_mov_b32 v223, s63")
        a("s_lshl_b32 s62, s2, 7")
        a(f"s_add_u32 s62, s62, {0x200000 + idx*8}")
        a("v_mov_b32 v221, 0")
        a("s_mov_b64 s[90:91], exec")
        a("s_mov_b64 exec, 1")
        a("buffer_store_dwordx2 v[222:223], v221, s[12:15], s62 offen")
        a("s_mov_b64 exec, s[90:91]")

    a.raw(HEADER.rstrip("\n"))
    a.raw("; @launch grid=(256,1,1) block=(256,1,1) lds=163840")
    a.raw('.amdgcn_target "amdgcn-amd-amdhsa--gfx950"')
    name = NAME + "_kernel"
    a.raw(".text")
    a.raw(f".globl {name}")
    a.raw(".p2align 8")
    a.raw(f".type {name},@function")
    a.label(name)
    pol = (" " + pol) if pol else ""
    QF, ACC, KO, VO, KR, VR, KF, VF, S = 16, 48, 112, 120, 128, 132, 140, 172, 204
    M, L, PB = 208, 209, 220
    TS, WM = 32768, 0xfffff

    a("s_cmp_ge_u32 s2, 256")
    a("s_cbranch_scc1 L_end")
    a("s_load_dwordx16 s[64:79], s[0:1], 0")
    a("s_load_dwordx8 s[80:87], s[0:1], 64")
    a("s_load_dwordx2 s[88:89], s[0:1], 96")
    a("v_lshrrev_b32 v1, 6, v0")
    a("v_and_b32 v2, 63, v0")
    a("v_readfirstlane_b32 s3, v1")
    a("v_and_b32 v3, 15, v2")
    a("v_lshrrev_b32 v4, 4, v2")
    a("v_lshrrev_b32 v5, 5, v2")
    a("v_and_b32 v6, 31, v2")
    a("s_lshl_b32 s23, s2, 20")
    a("s_lshl_b32 s22, s3, 13")
    a("s_add_u32 s23, s23, s22")
    a("s_mov_b32 s22, 0")
    a("s_mov_b32 s27, 0x80000000")
    a("s_lshl_b32 s25, s3, 15")
    for k in range(8):
        a(f"s_add_u32 s{32+k}, s25, {k*4096}")
    a(f"s_mul_i32 s44, s2, {(1<<16)//7+1}")
    a("s_lshr_b32 s44, s44, 16")
    a("s_mul_i32 s45, s44, 7")
    a("s_sub_u32 s45, s2, s45")
    a("s_and_b32 s46, s2, 7")
    a("s_lshr_b32 s47, s2, 3")
    a("v_lshlrev_b32 v8, 9, v5")
    for n in range(8):
        add = 4096 if n >= 4 else 0
        a(f"v_or_b32 v9, {2*n}, v5")
        a("v_xor_b32 v9, v9, v6")
        a(f"v_lshl_add_u32 v{KO+n}, v9, 4, v8")
        if add:
            a(f"v_add_u32 v{KO+n}, {add}, v{KO+n}")
        a(f"v_or_b32 v9, {(2*n)&7}, v5")
        a("v_lshlrev_b32 v9, 1, v9")
        a("v_xor_b32 v9, v9, v6")
        a(f"v_lshl_add_u32 v{VO+n}, v9, 4, v8")
        if add:
            a(f"v_add_u32 v{VO+n}, {add}, v{VO+n}")
    a("v_lshl_add_u32 v7, v1, 1, v5")
    a("v_mul_u32_u24 v7, 896, v7")
    a("v_lshl_add_u32 v7, v6, 2, v7")
    a("s_waitcnt lgkmcnt(0)")
    srd(a, 4, P_K, 0x10000000)
    srd(a, 8, P_V, 0x10000000)
    srd(a, 12, P_WS, WS_SIZE)
    srd(a, 16, P_X, 7168)
    srd(a, 48, P_DBG, 256)

    def issue(kind, slot, soff):
        srdr = "s[4:7]" if kind == "K" else "s[8:11]"
        vo = KO if kind == "K" else VO
        sl = slot + (0 if kind == "K" else 2)
        for half in range(2):
            a(f"s_mov_b32 m0, s{32 + 2*sl + half}")
            a("s_nop 0")
            for q in range(4):
                n = 4*half + q
                off = f" offset:{1024*q}" if q else ""
                a(f"buffer_load_dwordx4 v{vo+n}, {srdr}, {soff} offen{off}{pol} lds")

    def ring_offsets():
        a("s_add_u32 s26, s23, s22")
        a(f"s_add_u32 s22, s22, {TS}")
        a("s_add_u32 s28, s23, s22")
        a(f"s_add_u32 s22, s22, {TS}")

    def go_read():
        a("ds_read_b32 v15, v14")
        a("s_waitcnt lgkmcnt(0)")
        a("v_readfirstlane_b32 s62, v15")

    def ring_paced(tag, mid=None, pre=False):
        a(f"v_mov_b32 v14, {LDS_GO}")
        a("s_mov_b32 s62, 0")
        if not pre:
            ring_offsets()
            issue("K", 0, "s26")
        if mid: mid()
        for k, (kind, slot, so_) in enumerate((("V", 0, "s26"), ("K", 1, "s28"), ("V", 1, "s28"))):
            a("s_cmp_lg_u32 s62, 0")
            a(f"s_cbranch_scc1 L_rp{tag}{k}")
            a("s_waitcnt vmcnt(0)")
            go_read()
            a.label(f"L_rp{tag}{k}")
            issue(kind, slot, so_)

    def wait_go(tag):
        a("s_mov_b32 s63, 0")
        a.label(f"L_wg{tag}")
        a("s_cmp_lg_u32 s62, 0")
        a(f"s_cbranch_scc1 L_wgd{tag}")
        a("s_add_u32 s63, s63, 1")
        a(f"s_cmp_ge_u32 s63, {SPIN_MAX*16}")
        a(f"s_cbranch_scc1 L_wgd{tag}")
        a("s_sleep 1")
        go_read()
        a(f"s_branch L_wg{tag}")
        a.label(f"L_wgd{tag}")

    XD, XF = 72, 80
    def x_loads():
        for k in range(7):
            a(f"buffer_load_dword v{XD+k}, v7, s[16:19], 0 offen offset:{128*k}")

    def layernorm():
        for k in range(7):
            a(f"v_lshlrev_b32 v{XF+2*k}, 16, v{XD+k}")
            a(f"v_and_b32 v{XF+2*k+1}, 0xffff0000, v{XD+k}")
        a(f"v_add_f32 v94, v{XF}, v{XF+1}")
        a(f"v_add_f32 v95, v{XF+2}, v{XF+3}")
        for k in range(4, 14, 2):
            a(f"v_add_f32 v94, v94, v{XF+k}")
            a(f"v_add_f32 v95, v95, v{XF+k+1}")
        a("v_add_f32 v94, v94, v95")
        reduce32_add(a, 94, 95)
        a(f"v_mul_f32 v94, {f32bits(1.0/448):#x}, v94")
        a(f"v_sub_f32 v96, v{XF}, v94")
        a("v_mul_f32 v97, v96, v96")
        a(f"v_sub_f32 v96, v{XF+1}, v94")
        a("v_mul_f32 v98, v96, v96")
        for k in range(2, 14):
            a(f"v_sub_f32 v96, v{XF+k}, v94")
            a(f"v_fmac_f32 v{97+(k&1)}, v96, v96")
        a("v_add_f32 v97, v97, v98")
        reduce32_add(a, 97, 95)
        a(f"v_mul_f32 v97, {f32bits(1.0/448):#x}, v97")
        round_bf16_pair(a, 94, 97, 95)
        a(f"v_add_f32 v97, {f32bits(1e-5):#x}, v97")
        round_bf16_pair(a, 97, 96, 95)
        a("v_sqrt_f32 v97, v97")
        a("s_nop 0")
        round_bf16_pair(a, 97, 96, 95)
        a("v_rcp_f32 v98, v97")
        a("s_nop 0")
        for k in range(7):
            f0, f1 = XF+2*k, XF+2*k+1
            a(f"v_sub_f32 v{f0}, v{f0}, v94")
            a(f"v_sub_f32 v{f1}, v{f1}, v94")
            round_bf16_pair(a, f0, f1, 95)
            a(f"v_mul_f32 v96, v{f0}, v98")
            a(f"v_mul_f32 v99, v{f1}, v98")
            a(f"v_fma_f32 v{f0}, -v96, v97, v{f0}")
            a(f"v_fma_f32 v{f1}, -v99, v97, v{f1}")
            a(f"v_fmac_f32 v96, v{f0}, v98")
            a(f"v_fmac_f32 v99, v{f1}, v98")
            a(f"v_cvt_pk_bf16_f32 v{XD+k}, v96, v99")
        for k in range(7):
            a(f"ds_write_b32 v7, v{XD+k} offset:{LDS_XN+128*k}")
        a("s_waitcnt lgkmcnt(0)")

    def proj_dma(is_h):
        stride = 3584 if is_h else 8192
        ldsbase = LDS_W1 if is_h else LDS_WQ
        srd(a, 92, P_W1 if is_h else P_WQ, 448*stride)
        if is_h:
            a("s_mul_i32 s54, s46, 14")
        else:
            a("s_lshl_b32 s54, s46, 5")
        a("s_add_u32 s54, s54, s47")
        a("s_lshl_b32 s55, s54, 5")
        a("v_lshrrev_b32 v10, 1, v2")
        a(f"v_mul_u32_u24 v10, {stride}, v10")
        a("v_and_b32 v11, 1, v2")
        a("v_lshl_add_u32 v10, v11, 4, v10")
        a("s_mov_b32 s56, s55")
        for n in range(14):
            a(f"s_mov_b32 m0, {ldsbase + n*1024}")
            a("s_nop 0")
            a("buffer_load_dwordx4 v10, s[92:95], s56 offen lds")
            if n < 13:
                a(f"s_add_u32 s56, s56, {32*stride}")
        if is_h:
            srd(a, 28, P_B1, 3584)
            a("v_lshlrev_b32 v11, 1, v3")
            a("buffer_load_ushort v104, v11, s[28:31], s55 offen")

    XA, B, D = 140, 48, 196
    def proj_areads():
        a("v_and_b32 v10, 7, v3")
        a("v_mul_u32_u24 v10, 896, v10")
        a("v_lshl_add_u32 v10, v4, 4, v10")
        for s in range(14):
            a(f"ds_read_b128 v[{XA+4*s}:{XA+4*s+3}], v10 offset:{LDS_XN+64*s}")
        a("s_waitcnt lgkmcnt(0)")

    def h_store_addr():
        a("v_lshrrev_b32 v105, 2, v2")
        a("v_mul_u32_u24 v105, 7168, v105")
        a("v_and_b32 v106, 3, v2")
        a("v_lshl_add_u32 v105, v106, 4, v105")
        a("s_mul_i32 s57, s46, 14")
        a("s_add_u32 s57, s57, s47")
        a("s_lshl_b32 s57, s57, 6")
        a(f"s_add_u32 s57, s57, {WS_H}")

    def proj_gemm(is_h):
        ldsbase = LDS_W1 if is_h else LDS_WQ
        T = (16384 if is_h else 24576)
        lb = 0
        a("v_lshrrev_b32 v11, 2, v3")
        a("v_lshl_add_u32 v11, v4, 3, v11")
        a("v_lshlrev_b32 v11, 5, v11")
        a("v_and_b32 v12, 3, v3")
        a("v_lshl_add_u32 v11, v12, 3, v11")
        if is_h:
            a(f"v_add_u32 v11, {ldsbase}, v11")
        a(f"s_waitcnt vmcnt({8 if is_h else 0})")
        if not is_h:
            stamp(3)
        for s in range(14):
            a(f"ds_read_b64_tr_b16 v[{B+4*s}:{B+4*s+1}], v11 offset:{lb+1024*s}")
            a(f"ds_read_b64_tr_b16 v[{B+4*s+2}:{B+4*s+3}], v11 offset:{lb+1024*s+128}")
        a("s_waitcnt lgkmcnt(0)")
        for s in range(14):
            c = "0" if s == 0 else f"v[{D}:{D+3}]"
            a(f"v_mfma_f32_16x16x32_bf16 v[{D}:{D+3}], v[{XA+4*s}:{XA+4*s+3}], v[{B+4*s}:{B+4*s+3}], {c}")
        if is_h:
            a("v_lshlrev_b32 v10, 8, v4")
            a("v_lshl_add_u32 v10, v3, 2, v10")
            a(f"v_add_u32 v10, {ldsbase}, v10")
        else:
            a("v_lshlrev_b32 v10, 7, v4")
            a("v_lshl_add_u32 v10, v3, 1, v10")
        a("v_lshlrev_b32 v13, 4, v2")
        if is_h:
            a(f"v_add_u32 v13, {ldsbase}, v13")
        a("s_nop 7")
        if is_h:
            a("v_lshlrev_b32 v104, 16, v104")
            for p in range(2):
                round_bf16_pair(a, D+2*p, D+2*p+1, 11)
            for r in range(4):
                a(f"v_add_f32 v{D+r}, v{D+r}, v104")
            for p in range(2):
                round_bf16_pair(a, D+2*p, D+2*p+1, 11)
            kk = -2.0 * LOG2E * 0.7978845608028654
            for r in range(4):
                x = D + r
                a(f"v_mul_f32 v12, v{x}, v{x}")
                a(f"v_mul_f32 v12, {f32bits(0.044715):#x}, v12")
                a(f"v_fma_f32 v12, v12, v{x}, v{x}")
                a(f"v_mul_f32 v12, {f32bits(kk):#x}, v12")
                a("v_exp_f32 v12, v12")
                a("s_nop 0")
                a("v_add_f32 v12, 1.0, v12")
                a("v_rcp_f32 v12, v12")
                a("s_nop 0")
                a(f"v_mul_f32 v{x}, v{x}, v12")
            for p in range(2):
                round_bf16_pair(a, D+2*p, D+2*p+1, 11)
            for r in range(4):
                a(f"v_or_b32 v{D+r}, 1, v{D+r}")
            a("v_cmp_gt_u32 vcc, 32, v2")
            a("s_and_saveexec_b64 s[60:61], vcc")
            for r in range(4):
                a(f"ds_write_b32 v10, v{D+r} offset:{T+64*r}")
            a("s_waitcnt lgkmcnt(0)")
            a(f"ds_read_b128 v[{D}:{D+3}], v13 offset:{T}")
            a("s_waitcnt lgkmcnt(0)")
            a(f"buffer_store_dwordx4 v[{D}:{D+3}], v105, s[12:15], s57 offen sc0 sc1")
            a("s_mov_b64 exec, s[60:61]")
        else:
            a(f"v_cvt_pk_bf16_f32 v12, v{D}, v{D+1}")
            a(f"v_cvt_pk_bf16_f32 v14, v{D+2}, v{D+3}")
            a("v_cmp_gt_u32 vcc, 32, v2")
            a("s_and_saveexec_b64 s[60:61], vcc")
            a(f"ds_write_b16 v10, v12 offset:{T}")
            a(f"ds_write_b16_d16_hi v10, v12 offset:{T+32}")
            a(f"ds_write_b16 v10, v14 offset:{T+64}")
            a(f"ds_write_b16_d16_hi v10, v14 offset:{T+96}")
            a("s_mov_b64 exec, s[60:61]")
            a("v_lshrrev_b32 v11, 1, v2")
            a("v_lshlrev_b32 v11, 13, v11")
            a("v_and_b32 v12, 1, v2")
            a("v_lshl_add_u32 v11, v12, 4, v11")
            a("v_cmp_gt_u32 vcc, 16, v2")
            a("s_and_saveexec_b64 s[60:61], vcc")
            a("s_waitcnt lgkmcnt(0)")
            a(f"ds_read_b128 v[{D}:{D+3}], v13 offset:{T}")
            a("s_waitcnt lgkmcnt(0)")
            a(f"buffer_store_dwordx4 v[{D}:{D+3}], v11, s[12:15], s55 offen sc0 sc1")
            a("s_mov_b64 exec, s[60:61]")
            if stamps:
                a("s_memrealtime s[90:91]")
                a("s_waitcnt lgkmcnt(0)")
                a("v_mov_b32 v218, s90")
                a("v_mov_b32 v219, s91")
            a("s_waitcnt vmcnt(0)")
            if stamps:
                a("s_lshl_b32 s62, s2, 7")
                a(f"s_add_u32 s62, s62, {0x200000 + 11*8}")
                a("v_mov_b32 v221, 0")
                a("s_mov_b64 exec, 1")
                a("buffer_store_dwordx2 v[218:219], v221, s[12:15], s62 offen")
                a("s_mov_b64 exec, -1")

    a("s_cmp_eq_u32 s3, 0")
    a("s_cbranch_scc1 L_w0")
    a("s_cmp_eq_u32 s3, 1")
    a("s_cbranch_scc1 L_w1")
    a("s_cmp_eq_u32 s3, 2")
    a("s_cbranch_scc1 L_w2")
    def role_dma(tag):
        a("s_cmp_ge_u32 s2, 161")
        a(f"s_cbranch_scc1 L_rd_done{tag}")
        a("v_lshrrev_b32 v10, 3, v2")
        a("v_mul_u32_u24 v10, 896, v10")
        a("v_and_b32 v11, 7, v2")
        a("v_lshl_add_u32 v10, v11, 4, v10")
        a("s_lshl_b32 s54, s45, 7")
        a("s_cmp_ge_u32 s44, 16")
        a(f"s_cbranch_scc1 L_rd_ffn{tag}")
        srd(a, 92, P_WO, 4096*896)
        a(f"s_mul_i32 s55, s44, {256*896}")
        a("s_add_u32 s54, s54, s55")
        for n in range(32):
            a(f"s_mov_b32 m0, {LDS_W + n*1024}")
            a("s_nop 0")
            a("buffer_load_dwordx4 v10, s[92:95], s54 offen lds")
            if n < 31:
                a(f"s_add_u32 s54, s54, {8*896}")
        a(f"s_branch L_rd_done{tag}")
        a.label(f"L_rd_ffn{tag}")
        srd(a, 92, P_W2, 1792*896)
        a("s_sub_u32 s55, s44, 16")
        a(f"s_mul_i32 s55, s55, {256*896}")
        a("s_add_u32 s54, s54, s55")
        for n in range(32):
            a(f"s_mov_b32 m0, {LDS_W + n*1024}")
            a("s_nop 0")
            a("buffer_load_dwordx4 v10, s[92:95], s54 offen lds")
            if n < 31:
                a(f"s_add_u32 s54, s54, {8*896}")
        a.label(f"L_rd_done{tag}")

    def q_loads():
        a("s_lshr_b32 s24, s2, 2")
        a("s_lshl_b32 s24, s24, 10")
        a("v_and_b32 v7, 1, v3")
        a("v_lshlrev_b32 v7, 9, v7")
        a("v_lshl_add_u32 v7, v4, 4, v7")
        for s in range(8):
            a(f"buffer_load_dwordx4 v[{QF+4*s}:{QF+4*s+3}], v7, s[12:15], s24 offen offset:{64*s} sc0 sc1")

    def zero16():
        for r in range(16, 20):
            a(f"v_mov_b32 v{r}, 0")

    zero16()
    a("v_lshlrev_b32 v10, 4, v2")
    a("s_cmp_ge_u32 s2, 161")
    a("s_cbranch_scc1 L_w3_noclr")
    a("s_mul_i32 s54, s45, 23")
    a("s_add_u32 s54, s54, s44")
    a("s_lshl_b32 s54, s54, 11")
    a(f"s_add_u32 s54, s54, {WS_P3}")
    a("buffer_store_dwordx4 v[16:19], v10, s[12:15], s54 offen sc0 sc1")
    a("buffer_store_dwordx4 v[16:19], v10, s[12:15], s54 offen offset:1024 sc0 sc1")
    a.label("L_w3_noclr")
    x_loads()
    if early:
        ring_offsets()
        issue("K", 0, "s26")
        a("s_waitcnt vmcnt(8)")
    else:
        a("s_waitcnt vmcnt(0)")
    layernorm()
    a("s_barrier")
    ring_paced("w3", lambda: a("s_barrier"), pre=early)
    wait_go("w3")
    q_loads()
    a("s_barrier")
    a("s_branch L_join")
    a.label("L_w2")
    zero16()
    a("v_lshlrev_b32 v10, 4, v2")
    a("s_lshl_b32 s54, s2, 11")
    a(f"s_add_u32 s54, s54, {WS_PO}")
    a("buffer_store_dwordx4 v[16:19], v10, s[12:15], s54 offen sc0 sc1")
    a("buffer_store_dwordx4 v[16:19], v10, s[12:15], s54 offen offset:1024 sc0 sc1")
    a("s_lshl_b32 s54, s2, 4")
    a(f"s_add_u32 s54, s54, {WS_ML}")
    a("v_cmp_eq_u32 vcc, 0, v2")
    a("s_and_saveexec_b64 s[60:61], vcc")
    a("buffer_store_dwordx4 v[16:19], v10, s[12:15], s54 offen sc0 sc1")
    a("s_and_b32 s54, s2, 3")
    a("s_cmp_lg_u32 s54, 0")
    a("s_cbranch_scc1 L_w2_noctr")
    a("s_lshl_b32 s54, s2, 4")
    a(f"s_add_u32 s54, s54, {WS_CTR}")
    a("buffer_store_dwordx4 v[16:19], v10, s[12:15], s54 offen sc0 sc1")
    a.label("L_w2_noctr")
    a("s_mov_b64 exec, s[60:61]")
    x_loads()
    a(f"v_mov_b32 v14, {LDS_GO}")
    a("ds_write_b32 v14, v16")
    if early:
        ring_offsets()
        issue("K", 0, "s26")
        a("s_waitcnt vmcnt(8)")
    else:
        a("s_waitcnt vmcnt(0)")
    layernorm()
    a("s_barrier")
    if not early:
        ring_offsets()
        issue("K", 0, "s26")
    a("s_barrier")
    a("v_and_b32 v10, 7, v2")
    a("v_lshlrev_b32 v10, 4, v10")
    a("s_mov_b32 s54, 0")
    a(f"s_sleep {psl0}")
    a.label("L_poll_q")
    a("buffer_load_dword v11, v10, s[48:51], 0 offen offset:128 sc0 sc1")
    a("s_waitcnt vmcnt(0)")
    a("v_cmp_ne_u32 vcc, 32, v11")
    a("s_cbranch_vccz L_poll_q_done")
    a("s_add_u32 s54, s54, 1")
    a(f"s_cmp_ge_u32 s54, {SPIN_MAX}")
    a("s_cbranch_scc1 L_poll_q_done")
    a(f"s_sleep {psl}")
    a("s_branch L_poll_q")
    a.label("L_poll_q_done")
    a("v_mov_b32 v15, 1")
    a("ds_write_b32 v14, v15")
    q_loads()
    issue("V", 0, "s26")
    issue("K", 1, "s28")
    issue("V", 1, "s28")
    a("s_barrier")
    a("s_branch L_join")
    a.label("L_w1")
    a("s_cmp_ge_u32 s47, 14")
    a("s_cbranch_scc1 L_w1_noh")
    h_store_addr()
    zero16()
    a("v_cmp_gt_u32 vcc, 32, v2")
    a("s_and_saveexec_b64 s[60:61], vcc")
    a("buffer_store_dwordx4 v[16:19], v105, s[12:15], s57 offen sc0 sc1")
    a("s_mov_b64 exec, s[60:61]")
    x_loads()
    if early:
        ring_offsets()
        issue("K", 0, "s26")
        a("s_waitcnt vmcnt(8)")
    else:
        a("s_waitcnt vmcnt(0)")
    layernorm()
    a("s_barrier")
    proj_areads()
    a("s_barrier")
    ring_paced("w1a", pre=early)
    proj_dma(True)
    wait_go("w1a")
    q_loads()
    a("s_barrier")
    proj_gemm(True)
    a("s_waitcnt vmcnt(1)")
    role_dma("a")
    a("s_branch L_join2")
    a.label("L_w1_noh")
    x_loads()
    if early:
        ring_offsets()
        issue("K", 0, "s26")
        a("s_waitcnt vmcnt(8)")
    else:
        a("s_waitcnt vmcnt(0)")
    layernorm()
    a("s_barrier")
    a("s_barrier")
    ring_paced("w1b", pre=early)
    wait_go("w1b")
    q_loads()
    a("s_barrier")
    a("s_waitcnt vmcnt(0)")
    role_dma("b")
    a("s_branch L_join2")
    a.label("L_w0")
    stamp(0)
    x_loads()
    proj_dma(False)
    a("s_waitcnt vmcnt(14)")
    layernorm()
    a("s_barrier")
    stamp(1)
    proj_areads()
    a("s_barrier")
    proj_gemm(False)
    a("s_lshl_b32 s54, s46, 4")
    a("v_mov_b32 v10, s54")
    a("v_mov_b32 v11, 1")
    a("v_cmp_eq_u32 vcc, 0, v2")
    a("s_and_saveexec_b64 s[60:61], vcc")
    a("buffer_atomic_add v11, v10, s[48:51], 0 offen sc0")
    a("s_waitcnt vmcnt(0)")
    a("v_cmp_eq_u32 vcc, 31, v11")
    a("s_and_b64 exec, exec, vcc")
    a("s_cbranch_execz L_notlast")
    a("v_mov_b32 v11, 32")
    a("buffer_store_dword v11, v10, s[48:51], 0 offen offset:128 sc0 sc1")
    a.label("L_notlast")
    a("s_mov_b64 exec, s[60:61]")
    stamp(2)
    ring_paced("w0")
    wait_go("w0")
    stamp(4)
    q_loads()
    a("s_barrier")
    a.label("L_join")
    a("s_waitcnt vmcnt(0)")
    a.label("L_join2")
    a("v_xor_b32 v9, v4, v3")
    a("v_and_b32 v9, 3, v9")
    a("v_and_b32 v10, 12, v3")
    a("v_lshlrev_b32 v11, 9, v3")
    a("v_add_u32 v11, s25, v11")
    for q in range(4):
        a(f"v_xor_b32 v12, {4*q}, v10")
        a("v_add_u32 v12, v12, v9")
        a(f"v_lshl_add_u32 v{KR+q}, v12, 4, v11")
    a("v_lshrrev_b32 v9, 2, v3")
    a("v_lshl_add_u32 v9, v4, 2, v9")
    a("v_lshlrev_b32 v11, 9, v9")
    a("v_add_u32 v11, s25, v11")
    a("v_add_u32 v11, 16384, v11")
    a("v_and_b32 v10, 1, v3")
    a("v_lshl_add_u32 v11, v10, 3, v11")
    a("v_bfe_u32 v10, v3, 1, 1")
    a("v_lshl_add_u32 v11, v10, 4, v11")
    a("v_and_b32 v9, 7, v9")
    for nn in range(8):
        a(f"v_xor_b32 v12, {nn}, v9")
        a(f"v_lshl_add_u32 v{VR+nn}, v12, 5, v11")
    for k in range(64):
        a(f"v_mov_b32 v{ACC+k}, 0")
    a(f"v_mov_b32 v{M}, 0xf149f2ca")
    a(f"v_mov_b32 v{L}, 0")
    a(f"s_mov_b32 s30, {f32bits(LOG2E/16):#x}")
    a("s_mov_b32 s24, 0")
    if stamps:
        a("s_cmp_lg_u32 s3, 0")
        a("s_cbranch_scc1 L_st5")
        stamp(5)
        a.label("L_st5")
    a("s_lshr_b32 s31, s2, 2")
    a("s_lshl_b32 s99, s31, 6")
    a(f"s_add_u32 s99, s99, {WS_CTR}")
    a(f"s_add_u32 s96, s{P_WS}, s99")
    a(f"s_addc_u32 s97, s{P_WS+1}, 0")
    a("s_lshl_b32 s31, s31, 22")
    a("s_mov_b32 s99, 1")
    a("s_mov_b32 s100, 1")
    a("s_mov_b32 s98, 0")
    a.label("L_loop")
    for slot in range(2):
        so = slot * 8192
        a(f"s_cmp_eq_u32 s{99+slot}, 0")
        a("s_cbranch_scc1 L_loop_done")
        a("s_waitcnt vmcnt(24)")
        for s in range(8):
            a(f"ds_read_b128 v[{KF+4*s}:{KF+4*s+3}], v{KR+(s&3)} offset:{so + (s>>2)*256}")
        for s in range(8):
            a(f"s_waitcnt lgkmcnt({7-s})")
            c = "0" if s == 0 else f"v[{S}:{S+3}]"
            a(f"v_mfma_f32_16x16x32_bf16 v[{S}:{S+3}], v[{KF+4*s}:{KF+4*s+3}], v[{QF+4*s}:{QF+4*s+3}], {c}")
        a(f"s_cmp_lt_u32 s24, {nstat-2}")
        a(f"s_cbranch_scc0 L_dyn{slot}")
        a("s_add_u32 s29, s23, s22")
        a(f"s_add_u32 s22, s22, {TS}")
        a(f"s_branch L_dynd{slot}")
        a.label(f"L_dyn{slot}")
        if pmode == 0:
            a(f"s_lshr_b32 s26, s98, {((32-nstat)*4).bit_length()-1}")
            a("s_lshl_b32 s26, s26, 7")
            a(f"s_and_b32 s28, s98, {(32-nstat)*4-1}")
        else:
            a("s_and_b32 s26, s98, 3")
            a("s_lshl_b32 s26, s26, 7")
            a("s_lshr_b32 s28, s98, 2")
        a("s_add_u32 s26, s26, s28")
        a(f"s_add_u32 s26, s26, {nstat*4}")
        a("s_lshl_b32 s26, s26, 13")
        a("s_add_u32 s26, s26, s31")
        a(f"s_cmp_lt_u32 s98, {(32-nstat)*16}")
        a("s_cselect_b32 s29, s26, s27")
        a(f"s_cselect_b32 s{99+slot}, 1, 0")
        a.label(f"L_dynd{slot}")
        issue("K", slot, "s29")
        round_bf16_pair(a, S, S+1, 210)
        round_bf16_pair(a, S+2, S+3, 211)
        a(f"v_max3_f32 v212, v{S}, v{S+1}, v{S+2}")
        a(f"v_max_f32 v212, v212, v{S+3}")
        xlane_reduce_g(a, "v_max_f32", 212, 213)
        a(f"v_max_f32 v212, v212, v{M}")
        a(f"v_sub_f32 v213, v{M}, v212")
        a(f"v_mov_b32 v{M}, v212")
        a("v_mul_f32 v213, s30, v213")
        for r in range(4):
            a(f"v_sub_f32 v{S+r}, v{S+r}, v212")
        a("v_exp_f32 v213, v213")
        for r in range(4):
            a(f"v_mul_f32 v{S+r}, s30, v{S+r}")
        for r in range(4):
            a(f"v_exp_f32 v{S+r}, v{S+r}")
        a("s_nop 0")
        a(f"v_add_f32 v214, v{S}, v{S+1}")
        a(f"v_add_f32 v215, v{S+2}, v{S+3}")
        a(f"v_cvt_pk_bf16_f32 v{PB}, v{S}, v{S+1}")
        a(f"v_cvt_pk_bf16_f32 v{PB+1}, v{S+2}, v{S+3}")
        a("v_add_f32 v214, v214, v215")
        a(f"v_fma_f32 v{L}, v{L}, v213, v214")
        for k in range(64):
            a(f"v_mul_f32 v{ACC+k}, v213, v{ACC+k}")
        a("s_waitcnt vmcnt(24)")
        for n in range(16):
            a(f"ds_read_b64_tr_b16 v[{VF+2*n}:{VF+2*n+1}], v{VR+(n&7)} offset:{so + (n>>3)*256}")
        for n in range(16):
            a(f"s_waitcnt lgkmcnt({15-n})")
            a(f"v_mfma_f32_16x16x16_bf16 v[{ACC+4*n}:{ACC+4*n+3}], v[{VF+2*n}:{VF+2*n+1}], v[{PB}:{PB+1}], v[{ACC+4*n}:{ACC+4*n+3}]")
        issue("V", slot, "s29")
        a("s_add_u32 s24, s24, 1")
        a(f"s_cmp_lt_u32 s24, {nstat-2}")
        a(f"s_cbranch_scc1 L_nocl{slot}")
        a("s_mov_b32 s98, 1")
        a("s_atomic_add s98, s[96:97], 0x0 glc")
        a.label(f"L_nocl{slot}")
    a("s_branch L_loop")
    a.label("L_loop_done")
    a("s_waitcnt lgkmcnt(0)")
    if stamps:
        a("s_cmp_lg_u32 s3, 0")
        a("s_cbranch_scc1 L_st6")
        stamp(6)
        a.label("L_st6")
    xlane_reduce_g(a, "v_add_f32", L, 213)
    a("s_waitcnt vmcnt(0)")
    a("v_lshlrev_b32 v9, 10, v3")
    a("v_lshl_add_u32 v9, v4, 4, v9")
    a("v_add_u32 v9, s25, v9")
    a("v_lshlrev_b32 v10, 3, v3")
    a("v_add_u32 v10, s25, v10")
    a("v_cmp_gt_u32 vcc, 2, v3")
    a("s_and_saveexec_b64 s[40:41], vcc")
    for n in range(16):
        a(f"ds_write_b128 v9, v[{ACC+4*n}:{ACC+4*n+3}] offset:{64*n}")
    a(f"ds_write_b64 v10, v[{M}:{L}] offset:2048")
    a("s_mov_b64 exec, s[40:41]")
    a("s_waitcnt lgkmcnt(0)")
    a("s_barrier")
    a("v_lshrrev_b32 v9, 7, v0")
    a("v_and_b32 v10, 127, v0")
    a("v_lshlrev_b32 v11, 3, v9")
    a("v_lshlrev_b32 v12, 10, v9")
    a("v_lshl_add_u32 v12, v10, 3, v12")
    a("v_add_u32 v13, 0x10000, v11")
    a("v_add_u32 v14, 0x10000, v12")
    for w in range(4):
        a(f"ds_read_b64 v[{20+2*w}:{21+2*w}], v{11 if w < 2 else 13} offset:{(w&1)*32768+2048}")
    for w in range(4):
        a(f"ds_read_b64 v[{30+2*w}:{31+2*w}], v{12 if w < 2 else 14} offset:{(w&1)*32768}")
    a("s_waitcnt lgkmcnt(0)")
    a("v_max3_f32 v40, v20, v22, v24")
    a("v_max_f32 v40, v40, v26")
    for w in range(4):
        a(f"v_sub_f32 v{20+2*w}, v{20+2*w}, v40")
        a(f"v_mul_f32 v{20+2*w}, s30, v{20+2*w}")
        a(f"v_exp_f32 v{20+2*w}, v{20+2*w}")
    a("s_nop 0")
    a("v_mul_f32 v41, v20, v21")
    a("v_mul_f32 v42, v20, v30")
    a("v_mul_f32 v43, v20, v31")
    for w in range(1, 4):
        a(f"v_fmac_f32 v41, v{20+2*w}, v{21+2*w}")
        a(f"v_fmac_f32 v42, v{20+2*w}, v{30+2*w}")
        a(f"v_fmac_f32 v43, v{20+2*w}, v{31+2*w}")
    for r in range(40, 44):
        a(f"v_or_b32 v{r}, 1, v{r}")
    a("s_lshl_b32 s24, s2, 11")
    a(f"s_add_u32 s24, s24, {WS_PO}")
    a("buffer_store_dwordx2 v[42:43], v12, s[12:15], s24 offen sc0 sc1")
    a("s_lshl_b32 s24, s2, 4")
    a(f"s_add_u32 s24, s24, {WS_ML}")
    a("v_cmp_eq_u32 vcc, 0, v10")
    a("s_and_saveexec_b64 s[40:41], vcc")
    a("buffer_store_dwordx2 v[40:41], v11, s[12:15], s24 offen sc0 sc1")
    a("s_mov_b64 exec, s[40:41]")
    if stamps:
        a("s_cmp_lg_u32 s3, 0")
        a("s_cbranch_scc1 L_st7")
        stamp(7)
        a.label("L_st7")
    a("v_lshrrev_b32 v7, 5, v0")
    a("v_and_b32 v8, 31, v0")
    a("s_cmp_ge_u32 s2, 168")
    a("s_cbranch_scc1 L_end")
    a("s_cmp_ge_u32 s2, 161")
    a("s_cbranch_scc1 L_final")
    a("s_cmp_ge_u32 s44, 16")
    a("s_cbranch_scc1 L_r_ffn")
    a("v_lshlrev_b32 v9, 16, v7")
    a("v_lshl_add_u32 v9, v8, 5, v9")
    a("s_lshr_b32 s54, s44, 1")
    a("s_lshl_b32 s54, s54, 13")
    a("s_and_b32 s55, s44, 1")
    a("s_lshl_b32 s56, s55, 10")
    a("s_add_u32 s54, s54, s56")
    a(f"s_add_u32 s54, s54, {WS_PO}")
    a("s_add_u32 s57, s54, 4096")
    a("v_lshlrev_b32 v10, 9, v7")
    a("s_lshr_b32 s58, s44, 1")
    a("s_lshl_b32 s58, s58, 6")
    a("s_lshl_b32 s56, s55, 3")
    a("s_add_u32 s58, s58, s56")
    a(f"s_add_u32 s58, s58, {WS_ML}")
    a("s_mov_b32 s59, 0")
    a.label("L_poll_p")
    for sp in range(4):
        so_ = "s54" if sp < 2 else "s57"
        a(f"buffer_load_dwordx4 v[{16+8*sp}:{19+8*sp}], v9, s[12:15], {so_} offen offset:{(sp&1)*2048} sc0 sc1")
        a(f"buffer_load_dwordx4 v[{20+8*sp}:{23+8*sp}], v9, s[12:15], {so_} offen offset:{(sp&1)*2048+16} sc0 sc1")
    for sp in range(4):
        a(f"buffer_load_dwordx2 v[{48+2*sp}:{49+2*sp}], v10, s[12:15], s58 offen offset:{sp*16} sc0 sc1")
    a("s_waitcnt vmcnt(0)")
    a("v_and_b32 v56, v16, v17")
    a("v_and_b32 v57, v18, v19")
    for r in range(20, 56, 2):
        a(f"v_and_b32 v56, v56, v{r}")
        a(f"v_and_b32 v57, v57, v{r+1}")
    a("v_and_b32 v56, v56, v57")
    a("v_and_b32 v56, 1, v56")
    a("v_cmp_eq_u32 vcc, 0, v56")
    a("s_cbranch_vccz L_poll_p_done")
    a("s_add_u32 s59, s59, 1")
    a(f"s_cmp_ge_u32 s59, {SPIN_MAX}")
    a("s_cbranch_scc1 L_poll_p_done")
    a(f"s_sleep {tsl}")
    a("s_branch L_poll_p")
    a.label("L_poll_p_done")
    a("v_max3_f32 v56, v48, v50, v52")
    a("v_max_f32 v56, v56, v54")
    for sp in range(4):
        a(f"v_sub_f32 v{48+2*sp}, v{48+2*sp}, v56")
        a(f"v_mul_f32 v{48+2*sp}, s30, v{48+2*sp}")
        a(f"v_exp_f32 v{48+2*sp}, v{48+2*sp}")
    a("s_nop 0")
    a("v_mul_f32 v57, v48, v49")
    for sp in range(1, 4):
        a(f"v_fmac_f32 v57, v{48+2*sp}, v{49+2*sp}")
    a("v_rcp_f32 v57, v57")
    a("s_nop 0")
    for sp in range(4):
        a(f"v_mul_f32 v{48+2*sp}, v{48+2*sp}, v57")
    for e in range(8):
        a(f"v_mul_f32 v{16+e}, v48, v{16+e}")
        for sp in range(1, 4):
            a(f"v_fmac_f32 v{16+e}, v{48+2*sp}, v{16+8*sp+e}")
    for p in range(4):
        a(f"v_cvt_pk_bf16_f32 v{60+p}, v{16+2*p}, v{17+2*p}")
    a("s_branch L_r_act")
    a.label("L_r_ffn")
    a("v_mul_u32_u24 v9, 7168, v7")
    a("v_lshl_add_u32 v9, v8, 5, v9")
    a("s_sub_u32 s54, s44, 16")
    a("s_lshl_b32 s54, s54, 10")
    a(f"s_add_u32 s54, s54, {WS_H}")
    a("s_mov_b32 s59, 0")
    a.label("L_poll_h")
    a("buffer_load_dwordx4 v[16:19], v9, s[12:15], s54 offen sc0 sc1")
    a("buffer_load_dwordx4 v[20:23], v9, s[12:15], s54 offen offset:16 sc0 sc1")
    a("s_waitcnt vmcnt(0)")
    a("v_and_b32 v56, v16, v17")
    a("v_and_b32 v57, v18, v19")
    a("v_and_b32 v56, v56, v20")
    a("v_and_b32 v57, v57, v21")
    a("v_and_b32 v56, v56, v22")
    a("v_and_b32 v57, v57, v23")
    a("v_and_b32 v56, v56, v57")
    a("v_and_b32 v56, 1, v56")
    a("v_cmp_eq_u32 vcc, 0, v56")
    a("s_cbranch_vccz L_poll_h_done")
    a("s_add_u32 s59, s59, 1")
    a(f"s_cmp_ge_u32 s59, {SPIN_MAX}")
    a("s_cbranch_scc1 L_poll_h_done")
    a("s_sleep 2")
    a("s_branch L_poll_h")
    a.label("L_poll_h_done")
    for p in range(4):
        a(f"v_cvt_pk_bf16_f32 v{60+p}, v{16+2*p}, v{17+2*p}")
    a.label("L_r_act")
    if stamps:
        a("s_cmp_lg_u32 s3, 0")
        a("s_cbranch_scc1 L_st8")
        stamp(8)
        a.label("L_st8")
    a("v_lshlrev_b32 v9, 9, v7")
    a("v_lshl_add_u32 v9, v8, 4, v9")
    a(f"ds_write_b128 v9, v[60:63] offset:{LDS_ACT}")
    a("s_waitcnt lgkmcnt(0)")
    a("s_barrier")
    a("v_and_b32 v9, 7, v3")
    a("v_lshlrev_b32 v9, 9, v9")
    a("v_lshl_add_u32 v9, v4, 4, v9")
    a("v_lshrrev_b32 v10, 2, v3")
    a("v_lshl_add_u32 v10, v4, 3, v10")
    a("v_lshlrev_b32 v10, 7, v10")
    a("v_and_b32 v11, 3, v3")
    a("v_lshl_add_u32 v10, v11, 3, v10")
    a("s_lshl_b32 s54, s3, 5")
    a(f"s_add_u32 s54, s54, {LDS_W}")
    a("v_add_u32 v10, s54, v10")
    for s in range(8):
        a(f"ds_read_b128 v[{64+4*s}:{67+4*s}], v9 offset:{LDS_ACT+64*s}")
        a(f"ds_read_b64_tr_b16 v[{96+4*s}:{97+4*s}], v10 offset:{4096*s}")
        a(f"ds_read_b64_tr_b16 v[{98+4*s}:{99+4*s}], v10 offset:{4096*s+512}")
    a("s_waitcnt lgkmcnt(0)")
    for s in range(8):
        c = "0" if s == 0 else "v[128:131]"
        a(f"v_mfma_f32_16x16x32_bf16 v[128:131], v[{64+4*s}:{67+4*s}], v[{96+4*s}:{99+4*s}], {c}")
    a("v_lshlrev_b32 v9, 10, v4")
    a("v_lshl_add_u32 v9, v3, 2, v9")
    a("s_mul_i32 s54, s45, 23")
    a("s_add_u32 s54, s54, s44")
    a("s_lshl_b32 s54, s54, 11")
    a("s_lshl_b32 s55, s3, 6")
    a("s_add_u32 s54, s54, s55")
    a(f"s_add_u32 s54, s54, {WS_P3}")
    a("s_nop 4")
    for r in range(4):
        a(f"v_or_b32 v{128+r}, 1, v{128+r}")
    a("v_cmp_gt_u32 vcc, 32, v2")
    a("s_and_saveexec_b64 s[40:41], vcc")
    for r in range(4):
        a(f"buffer_store_dword v{128+r}, v9, s[12:15], s54 offen offset:{256*r} sc0 sc1")
    a("s_mov_b64 exec, s[40:41]")
    if stamps:
        a("s_cmp_lg_u32 s3, 0")
        a("s_cbranch_scc1 L_st9")
        stamp(9)
        a.label("L_st9")
    a("s_endpgm")
    a.label("L_final")
    a("s_sub_u32 s45, s2, 161")
    srd(a, 20, P_B2, 896)
    srd(a, 28, P_OUT, 7168)
    a("v_lshlrev_b32 v9, 8, v7")
    a("v_lshl_add_u32 v9, v8, 3, v9")
    a("v_mul_u32_u24 v10, 896, v7")
    a("v_lshl_add_u32 v10, v8, 2, v10")
    a("s_lshl_b32 s57, s45, 7")
    a("v_lshlrev_b32 v11, 2, v8")
    a("buffer_load_dword v64, v10, s[16:19], s57 offen")
    a("buffer_load_dword v65, v11, s[20:23], s57 offen")
    a("s_mov_b32 s59, 0")
    a.label("L_poll_f")
    a(f"s_mul_i32 s54, s45, {23*2048}")
    a(f"s_add_u32 s54, s54, {WS_P3}")
    for ks in range(23):
        a(f"buffer_load_dwordx2 v[{16+2*ks}:{17+2*ks}], v9, s[12:15], s54 offen offset:{(ks&1)*2048} sc0 sc1")
        if ks & 1:
            a("s_add_u32 s54, s54, 4096")
    a("s_waitcnt vmcnt(0)")
    a("v_and_b32 v66, v16, v17")
    a("v_and_b32 v67, v18, v19")
    for r in range(20, 62, 2):
        a(f"v_and_b32 v66, v66, v{r}")
        a(f"v_and_b32 v67, v67, v{r+1}")
    a("v_and_b32 v66, v66, v67")
    a("v_and_b32 v66, 1, v66")
    a("v_cmp_eq_u32 vcc, 0, v66")
    a("s_cbranch_vccz L_poll_f_done")
    a("s_add_u32 s59, s59, 1")
    a(f"s_cmp_ge_u32 s59, {SPIN_MAX}")
    a("s_cbranch_scc1 L_poll_f_done")
    a("s_sleep 2")
    a("s_branch L_poll_f")
    a.label("L_poll_f_done")
    if stamps:
        a("s_cmp_lg_u32 s3, 0")
        a("s_cbranch_scc1 L_st10")
        stamp(10)
        a.label("L_st10")
    for ks in range(1, 16):
        a(f"v_add_f32 v16, v16, v{16+2*ks}")
        a(f"v_add_f32 v17, v17, v{17+2*ks}")
    for ks in range(17, 23):
        a(f"v_add_f32 v48, v48, v{16+2*ks}")
        a(f"v_add_f32 v49, v49, v{17+2*ks}")
    round_bf16_pair(a, 16, 17, 12)
    round_bf16_pair(a, 48, 49, 12)
    a("v_lshlrev_b32 v66, 16, v65")
    a("v_and_b32 v67, 0xffff0000, v65")
    a("v_add_f32 v48, v48, v66")
    a("v_add_f32 v49, v49, v67")
    round_bf16_pair(a, 48, 49, 12)
    for r in range(2):
        a(f"v_mul_f32 v12, {f32bits(-LOG2E):#x}, v{48+r}")
        a("v_exp_f32 v12, v12")
        a("s_nop 0")
        a("v_add_f32 v12, 1.0, v12")
        a("v_rcp_f32 v12, v12")
        a("s_nop 0")
        a(f"v_mul_f32 v{48+r}, v{48+r}, v12")
    round_bf16_pair(a, 48, 49, 12)
    a("v_mul_f32 v16, v16, v48")
    a("v_mul_f32 v17, v17, v49")
    round_bf16_pair(a, 16, 17, 12)
    a("v_lshlrev_b32 v66, 16, v64")
    a("v_and_b32 v67, 0xffff0000, v64")
    a("v_add_f32 v16, v16, v66")
    a("v_add_f32 v17, v17, v67")
    a("v_cvt_pk_bf16_f32 v12, v16, v17")
    a("buffer_store_dword v12, v10, s[28:31], s57 offen")
    a.label("L_end")
    a("s_endpgm")
    a.raw('.section .rodata,"a"')
    a.raw(".p2align 6")
    a.raw(f".amdhsa_kernel {name}")
    a.raw("  .amdhsa_next_free_vgpr 224")
    a.raw("  .amdhsa_next_free_sgpr 102")
    a.raw("  .amdhsa_accum_offset 224")
    a.raw("  .amdhsa_group_segment_fixed_size 0")
    a.raw("  .amdhsa_kernarg_size 104")
    a.raw("  .amdhsa_user_sgpr_count 2")
    a.raw("  .amdhsa_user_sgpr_kernarg_segment_ptr 1")
    a.raw("  .amdhsa_system_sgpr_workgroup_id_x 1")
    a.raw(".end_amdhsa_kernel")
    return a.text()

def main():
    ap = argparse.ArgumentParser()
    ap.add_argument("-o", default=f"cdna_kernels/{NAME}.s")
    ap.add_argument("--pol", default="nt")
    ap.add_argument("--stamps", action="store_true")
    ap.add_argument("--nstat", type=int, default=24)
    ap.add_argument("--psl0", type=int, default=64)
    ap.add_argument("--psl", type=int, default=12)
    ap.add_argument("--pace", type=int, default=1)
    ap.add_argument("--pmode", type=int, default=0)
    ap.add_argument("--early", type=int, default=0)
    ap.add_argument("--tsl", type=int, default=2)
    args = ap.parse_args()
    open(args.o, "w").write(gen(args.pol, args.stamps, args.nstat, args.psl0, args.psl, args.pace, args.pmode, args.early, args.tsl))

main()
```
